```python
import torch

def _softmax(x, axis=-1):
    return torch.softmax(x, dim=axis)

def _gelu(x):
    return torch.nn.functional.gelu(x, approximate='tanh')

def _silu(x):
    return torch.nn.functional.silu(x)

def _sigmoid(x):
    return torch.sigmoid(x)

def _layernorm(x, axis=-1, eps=1e-05):
    m = x.mean(dim=axis, keepdim=True)
    v = x.var(dim=axis, keepdim=True, unbiased=False)
    return (x - m) / torch.sqrt(v + eps)

def _scatter_add(tgt, idx, src, axis=0):
    return tgt.clone().index_add_(axis, idx, src)

def _segment_sum(src, seg, n):
    out = torch.zeros((n,) + src.shape[1:], dtype=src.dtype)
    return out.index_add_(0, seg, src)

def _pad(x, pw):
    flat = tuple((v for pair in reversed(pw) for v in pair))
    return torch.nn.functional.pad(x, flat)
kernel_name = 'parallel_sum__memory_aug_recurrent_mem_tr__dense_activation_relu__prompt'

def setup_inputs():

    _w = lambda a: (lambda t: t.to(torch.bfloat16) if t.is_floating_point() else t)(torch.as_tensor(a))

    def _A_setup():
        B, S, Dm = (1, 2048, 512)
        H, Dh = (32, 128)
        M, seg = (8, 32)
        seg = min(seg, S)
        S = S // seg * seg
        return {'x': _w((lambda *s: torch.randn(*s, dtype=torch.bfloat16) * 0.05)(B, S, Dm)), 'mem0': _w((lambda *s: torch.randn(*s, dtype=torch.bfloat16) * 1.6)(B, M, Dm)), 'Wq': _w((lambda *s: torch.randn(*s, dtype=torch.bfloat16) * 0.8)(Dm, H, Dh) * Dm ** (-0.5)), 'Wk': _w((lambda *s: torch.randn(*s, dtype=torch.bfloat16) * 0.8)(Dm, H, Dh) * Dm ** (-0.5)), 'Wv': _w((lambda *s: torch.randn(*s, dtype=torch.bfloat16) * 1.6)(Dm, H, Dh) * Dm ** (-0.5)), 'Wo': _w((lambda *s: torch.randn(*s, dtype=torch.bfloat16) * 1.6)(H, Dh, Dm) * (H * Dh) ** (-0.5)), 'seg_len': seg}
    _A_in = _A_setup()

    def _B_setup():
        B, S, D, Dff = (1, 2048, 512, 1376)
        return {'x': _w((lambda *s: torch.randn(*s, dtype=torch.bfloat16) * 0.05)(B, S, D)), 'w1': _w((lambda *s: torch.randn(*s, dtype=torch.bfloat16) * 0.05)(D, Dff)), 'w2': _w((lambda *s: torch.randn(*s, dtype=torch.bfloat16) * 0.05)(Dff, D))}
    _B_in = _B_setup()
    return {'A_x': _A_in['x'], 'A_mem0': _A_in['mem0'], 'A_Wq': _A_in['Wq'], 'A_Wk': _A_in['Wk'], 'A_Wv': _A_in['Wv'], 'A_Wo': _A_in['Wo'], 'A_seg_len': _A_in['seg_len'], 'B_x': _B_in['x'], 'B_w1': _B_in['w1'], 'B_w2': _B_in['w2']}

def reference(A_x, A_mem0, A_Wq, A_Wk, A_Wv, A_Wo, A_seg_len, B_x, B_w1, B_w2):

    def _A_ref(x, mem0, Wq, Wk, Wv, Wo, seg_len):
        B, S, Dm = x.shape
        H, Dh = (Wq.shape[1], Wq.shape[2])
        M = mem0.shape[1]
        scale = Dh ** (-0.5)
        n_seg = S // seg_len
        L = M + seg_len
        idx = torch.arange(L)
        mask = (idx[:, None] < M) | (idx[:, None] >= idx[None, :])
        mem = mem0
        outs = []
        for s in range(n_seg):
            xs = x[:, s * seg_len:(s + 1) * seg_len, :].clone()
            h = torch.concatenate([mem, xs], axis=1)
            q = torch.einsum('btd,dhe->bhte', h, Wq)
            k = torch.einsum('btd,dhe->bhte', h, Wk)
            v = torch.einsum('btd,dhe->bhte', h, Wv)
            scores = torch.einsum('bhqe,bhke->bhqk', q, k) * scale
            scores = torch.where(mask[None, None], scores, -1000000000.0)
            p = _softmax(scores, axis=-1)
            o = torch.einsum('bhqk,bhke->bhqe', p, v)
            o = torch.einsum('bhte,hed->btd', o, Wo)
            mem = o[:, :M, :].clone()
            outs.append(o[:, M:, :])
        return torch.concatenate(outs, axis=1)

    def _B_ref(x, w1, w2):
        h = torch.einsum('bsd,df->bsf', x, w1)
        zero = torch.zeros_like(h)
        h = torch.maximum(h, zero)
        return torch.einsum('bsf,fd->bsd', h, w2)
    x = A_x
    xn = _layernorm(x, axis=-1)
    return x + _A_ref(xn, A_mem0, A_Wq, A_Wk, A_Wv, A_Wo, A_seg_len) + _B_ref(xn, B_w1, B_w2)
```

```python
import re

REG_RE = re.compile(r'^(v|a|s)(\d+)$|^(v|a|s)\[(\d+):(\d+)\]$')

def regs_of(tok):
    tok = tok.strip()
    neg = tok.lstrip('-|').rstrip('|')
    if neg.startswith('abs(') or neg.startswith('neg('):
        neg = neg[4:-1]
    m = REG_RE.match(neg)
    if m:
        if m.group(1):
            return {(m.group(1), int(m.group(2)))}
        return {(m.group(3), i) for i in range(int(m.group(4)), int(m.group(5)) + 1)}
    if neg == 'vcc':
        return {('s', 106), ('s', 107)}
    if neg == 'vcc_lo':
        return {('s', 106)}
    if neg == 'vcc_hi':
        return {('s', 107)}
    if neg == 'exec':
        return {('x', 0), ('x', 1)}
    if neg == 'exec_lo':
        return {('x', 0)}
    if neg == 'exec_hi':
        return {('x', 1)}
    if neg == 'm0':
        return {('m', 0)}
    return set()

TRANS = ('v_exp_', 'v_log_', 'v_rcp_', 'v_rsq_', 'v_sqrt_', 'v_sin_', 'v_cos_')

class Ins:
    __slots__ = ('text', 'op', 'kind', 'wr', 'rd', 'ab', 'c', 'passes', 'dpp', 'perm', 'trans', 'ws',
                 'target', 'uncond', 'sdata', 'lds_dma', 'rl', 'opsel', 'idx')
    def __init__(self, text):
        self.text = text
        body = text.split(';')[0].strip()
        parts = body.split(None, 1)
        op = parts[0]
        self.op = op
        rest = parts[1] if len(parts) > 1 else ''
        toks = [t.strip() for t in rest.split(',')] if rest else []
        mods = ''
        m = re.search(r'\s(quad_perm|op_sel|op_sel_hi|neg_lo|neg_hi|row_|bank_|offset|offen|idxen|sc0|sc1|nt|lds|dst_sel|src0_sel|src1_sel|bound_ctrl|clamp|cbsz|abid|blgp|mul:|div:|glc|dst_unused)', ' ' + rest)
        if m:
            pos = m.start()
            mods = rest[pos:]
            rest2 = rest[:pos]
            toks = [t.strip() for t in rest2.split(',')] if rest2.strip() else []
        self.wr = set(); self.rd = set(); self.ab = set(); self.c = set(); self.idx = set()
        self.passes = 0; self.dpp = False; self.perm = False; self.trans = False
        self.ws = 1; self.target = None; self.uncond = False; self.sdata = set(); self.lds_dma = False
        self.rl = False; self.opsel = False
        R = [regs_of(t) for t in toks]
        if op.startswith('v_mfma') or op.startswith('v_smfmac'):
            self.kind = 'mfma'
            self.passes = 8 if '32x32' in op else 4
            self.wr = R[0]
            self.ab = R[1] | R[2]
            if op.startswith('v_smfmac'):
                self.c = R[0]; self.idx = R[3]
            else:
                self.c = R[3]
            self.rd = self.ab | self.c | self.idx
        elif op.startswith('v_'):
            self.kind = 'valu'
            if op == 'v_nop':
                pass
            elif 'permlane' in op and 'swap' in op:
                self.wr = R[0] | R[1]; self.rd = R[0] | R[1]; self.perm = True
            else:
                self.wr = set(R[0])
                srcs = R[1:]
                if re.match(r'v_(add|sub|subrev|addc|subb|subbrev)_co_u32', op) or op.startswith('v_div_scale') or op.startswith('v_mad_u64_u32'):
                    self.wr |= R[1]; srcs = R[2:]
                for s in srcs: self.rd |= s
                if op.startswith('v_cndmask') and len(toks) == 3:
                    self.rd |= regs_of('vcc')
                if op.startswith('v_cmpx'):
                    self.wr |= regs_of('exec')
                if re.match(r'v_(fmac|mac|pk_fmac|dot2c|dot4c)', op) or op.startswith('v_writelane'):
                    self.rd |= R[0]
                if op.startswith('v_readlane') or op.startswith('v_readfirstlane'):
                    self.rl = True
                if 'dpp' in op or 'quad_perm' in mods or 'row_' in mods:
                    self.dpp = True
                    self.rd |= R[0]
                if op.startswith(TRANS):
                    self.trans = True
                if ('dst_sel' in mods and 'dst_sel:DWORD' not in mods) or ('op_sel:' in mods and not op.startswith('v_pk')):
                    self.opsel = True
        elif op.startswith('ds_'):
            self.kind = 'ds'
            if op.startswith('ds_read') or 'permute' in op or 'rtn' in op or op.startswith('ds_swizzle'):
                self.wr = R[0]
                for s in R[1:]: self.rd |= s
            else:
                for s in R: self.rd |= s
        elif op.startswith('buffer_') or op.startswith('global_') or op.startswith('flat_'):
            self.kind = 'vmem'
            islds = bool(re.search(r'\blds\b', mods)) or '_lds_' in op
            self.lds_dma = islds
            if 'load' in op and not islds:
                self.wr = R[0]
                for s in R[1:]: self.rd |= s
            elif 'atomic' in op and 'sc0' in mods and op.startswith('global_'):
                self.wr = R[0]
                for s in R[1:]: self.rd |= s
            else:
                for s in R: self.rd |= s
                if 'atomic' in op and 'sc0' in mods:
                    self.wr = R[0]
                if 'store' in op and ('x3' in op or 'x4' in op):
                    self.sdata = R[0] if op.startswith('buffer_') else R[1]
        elif op.startswith('s_'):
            self.kind = 'salu'
            if op == 's_nop':
                self.ws = int(toks[0], 0) + 1
            elif op.startswith('s_cbranch'):
                self.target = toks[0]
            elif op == 's_branch':
                self.target = toks[0]; self.uncond = True
            elif op == 's_endpgm':
                self.uncond = True
            elif op.startswith('s_cmp') or op.startswith('s_waitcnt') or op in ('s_barrier', 's_setprio', 's_sleep') or op.startswith('s_bitcmp'):
                for s in R: self.rd |= s
            else:
                if R:
                    self.wr = R[0]
                    for s in R[1:]: self.rd |= s
                if 'saveexec' in op:
                    self.wr = self.wr | regs_of('exec')
        else:
            raise ValueError('unknown instr: ' + text)

def vregs(s):
    return {r for r in s if r[0] in 'va'}
def sregs(s):
    return {r for r in s if r[0] == 's'}

def need(p, c):
    n = 0
    if p.kind == 'valu':
        pv = vregs(p.wr); ps = sregs(p.wr)
        if c.kind == 'mfma' and pv & c.rd: n = max(n, 2)
        if c.kind == 'vmem' and ps & c.rd: n = max(n, 5)
        if c.kind == 'valu':
            if ps & c.rd:
                n = max(n, 4 if (c.op.startswith('v_readlane') or c.op.startswith('v_writelane')) else 2)
                if c.op.startswith('v_div_fmas'): n = max(n, 4)
            if c.op.startswith('v_div_fmas') and ('s', 106) in ps: n = max(n, 4)
            if c.rl and pv & c.rd: n = max(n, 1)
            if c.dpp and pv & c.rd: n = max(n, 2)
            if c.perm and pv & c.rd: n = max(n, 2)
            if p.opsel and pv & (c.rd | c.wr): n = max(n, 1)
        if p.trans and pv & c.rd: n = max(n, 1)
        if p.op.startswith('v_dot') and c.op != p.op and pv & (c.rd | c.wr): n = max(n, 3)
        if any(r[0] == 'x' for r in p.wr):
            if c.kind == 'mfma': n = max(n, 4)
            if c.kind == 'valu': n = max(n, 5 if c.dpp else 4 if (c.perm or c.rl) else 2)
    elif p.kind == 'mfma':
        big = 8 if p.passes == 4 else 12
        if c.kind == 'mfma':
            if p.wr & (c.ab | c.idx): n = max(n, big)
            if p.wr & c.c:
                if not (p.wr == c.c and p.passes == c.passes): n = max(n, big - 2)
            if p.wr & c.wr and p.passes != c.passes: n = max(n, big)
        elif c.kind in ('valu', 'vmem', 'ds'):
            if p.wr & (c.rd | c.wr): n = max(n, big)
            if c.kind == 'valu' and (p.c | p.idx) & c.wr: n = max(n, 3 if p.passes == 4 else 7)
    elif p.kind == 'vmem':
        if p.sdata and p.sdata & c.wr:
            n = max(n, 2 if c.kind in ('valu', 'mfma') else 1)
    elif p.kind == 'salu':
        if ('m', 0) in p.wr and c.kind == 'vmem' and c.lds_dma: n = max(n, 1)
    return n

class Asm:
    def __init__(self):
        self.items = []
        self.vm = []
        self.lg = []
        self.uid = 0
    def raw(self, t):
        self.items.append(('r', t))
    def label(self, n):
        self.items.append(('l', n))
    def newlabel(self, p='L'):
        self.uid += 1
        return f'{p}_{self.uid}'
    def __call__(self, text, tag=None):
        for line in text.split('\n'):
            s = line.strip()
            if not s or s.startswith(';'):
                continue
            if s.endswith(':'):
                self.label(s[:-1]); continue
            ins = Ins(s)
            self.items.append(('i', ins))
            if ins.kind == 'vmem': self.vm.append(tag)
            if ins.kind == 'ds': self.lg.append(tag)
            if ins.op == 's_waitcnt':
                m = re.search(r'vmcnt\((\d+)\)', s)
                if m:
                    k = int(m.group(1)); self.vm = self.vm[len(self.vm) - k:] if k < len(self.vm) else self.vm
                m = re.search(r'lgkmcnt\((\d+)\)', s)
                if m:
                    k = int(m.group(1)); self.lg = self.lg[len(self.lg) - k:] if k < len(self.lg) else self.lg
    def _cnt(self, lst, tag):
        idx = [i for i, t in enumerate(lst) if t == tag]
        if not idx: return None
        return len(lst) - 1 - idx[-1]
    def wait_vm(self, tag):
        n = self._cnt(self.vm, tag)
        if n is None: return
        self(f's_waitcnt vmcnt({min(n, 63)})')
    def wait_lg(self, tag):
        n = self._cnt(self.lg, tag)
        if n is None: return
        self(f's_waitcnt lgkmcnt({min(n, 15)})')
    def reset_track(self):
        self.vm = []; self.lg = []

    def fix_hazards(self):
        items = self.items
        changed = True
        total = 0
        while changed:
            changed = False
            br = {}
            for i, it in enumerate(items):
                if it[0] == 'i' and it[1].target: br.setdefault(it[1].target, []).append(i)
            out = []
            inserts = {}
            for i, it in enumerate(items):
                if it[0] != 'i': continue
                c = it[1]
                if c.kind == 'salu': continue
                deficit = 0
                stack = [(i - 1, 0)]
                seen = set()
                while stack:
                    j, d = stack.pop()
                    while j >= 0 and d < 13:
                        if (j, d) in seen: break
                        seen.add((j, d))
                        t = items[j]
                        if t[0] == 'l':
                            for b in br.get(t[1], []):
                                stack.append((b - 1, d + 1))
                            j -= 1; continue
                        if t[0] == 'r':
                            j -= 1; continue
                        p = t[1]
                        if p.uncond: break
                        n = need(p, c)
                        if n > d: deficit = max(deficit, n - d)
                        d += p.ws + inserts.get(j, 0)
                        j -= 1
                if deficit:
                    inserts[i] = deficit
            if inserts:
                changed = True
                new = []
                for i, it in enumerate(items):
                    if i in inserts:
                        new.append(('i', Ins(f's_nop {inserts[i] - 1}')))
                        total += 1
                    new.append(it)
                items = new
        self.items = items
        return total
    def text(self):
        o = []
        for k, v in self.items:
            if k == 'i': o.append('    ' + v.text)
            elif k == 'l': o.append(v + ':')
            else: o.append(v)
        return '\n'.join(o) + '\n'

def vr(b, n=1, c='v'):
    return f'{c}{b}' if n == 1 else f'{c}[{b}:{b + n - 1}]'
```

```python
from asmlib import Asm, vr

FLAG_PROG = 0x0
FLAG_KV = 0x1000
FLAG_QF = 0x1400
FLAG_O = 0x1800
MBUF = 0x4000
INBOX = 0x10000
STAMP = 0xA0000
KM = 0x100000
VM = 0x900000
QW = 0x2000000
KW = 0x3000000
VW = 0x4000000
HW = 0x5000000
OW = 0x6000000
OOB = 0x40000000
IMG = 0x5000000
TS = 107 * 4096
KM_SS = 4096
KM_WS = 1024

S_WS, S_WQ, S_WK, S_WV, S_WO, S_X, S_DBG, S_OUT, S_W1, S_W2, S_M0 = [f's[{b}:{b+3}]' for b in range(36, 80, 4)]

L_KT = 0
L_QK = 24576
L_O = 28672
L_DUM = 30720
L_FR = 32768

DLIST = [0, 8, 2, 10, 32, 40, 34, 42]

sH, sW, sXCC, sT, sT2, sBud = 's3', 's4', 's5', 's6', 's7', 's8'
sStep, sPar, sMrd, sMrd2, sMwr, sMre = 's9', 's10', 's11', 's12', 's13', 's14'
sKb, sKd, sSeg, sKM, sVM, sP1, sP2, sP3 = 's15', 's16', 's17', 's18', 's19', 's20', 's21', 's22'
sSelLo, sSelHi, sParPrev, sSeg1, sSeg2, sSeg2b = 's23', 's24', 's25', 's26', 's27', 's28'
sC = 's[30:31]'
sFlagV = 's29'

vL16, vInW, vInR, vMW, vQKw, vQKr, vOw, vVt, vKd, vIdx, vFr, vKt = [f'v{i}' for i in range(12)]
SEL = 12
SENT = 16
TMP = 20
AF = 32
BUF = 64
ACC = 96
ACV = 112
VT = 120


def frag_map():
    m = {}
    slot = 0
    for k in (0, 2, 4):
        for mat in 'qk':
            for T in (0, 1):
                m[(mat, T, k)] = ('lds', slot); slot += 1
    for kp in (0, 1):
        for T in (0, 1):
            m[('o', 0, T, kp)] = ('lds', slot); slot += 1
    assert slot == 16
    regs = [('v', 128 + 8 * i) for i in range(16)] + [('a', 8 * i) for i in range(32)]
    it = iter(regs)
    for k in range(8):
        for mat in 'qkv':
            for T in (0, 1):
                if (mat, T, k) not in m: m[(mat, T, k)] = next(it)
    for p in range(1, 4):
        for kp in (0, 1):
            for T in (0, 1):
                m[('o', p, T, kp)] = next(it)
    assert len(m) == 64
    return m


class Stamps:
    def __init__(self, A, on):
        self.A = A; self.on = on; self.n = 0
    def init(self):
        if not self.on: return
        for i in range(84, 100): self.A(f's_mov_b32 s{i}, 0')
        self.A('s_memtime s[80:81]\ns_waitcnt lgkmcnt(0)')
    def bmark(self, i):
        if not self.on: return
        self.A(f'''s_memtime s[82:83]
        s_waitcnt lgkmcnt(0)
        s_sub_u32 s81, s82, s80
        s_add_u32 s{84+i}, s{84+i}, s81
        s_mov_b32 s80, s82''')
    def prep(self):
        if not self.on: return
        for i in range(14): self.A(f's_mov_b32 s{40+2*i}, s80')
    def mark(self, i):
        if not self.on: return
        self.A(f's_memtime s[{40+2*i}:{41+2*i}]')
    def flush(self, n):
        if not self.on: return
        self.A('s_waitcnt lgkmcnt(0)')
        for i in range(n):
            p = 's80' if i == 0 else f's{40+2*(i-1)}'
            self.A(f's_sub_u32 s81, s{40+2*i}, {p}\ns_add_u32 s{86+i}, s{86+i}, s81')
        self.A(f's_mov_b32 s80, s{40+2*(n-1)}')


def chain_role(A, opt):
    FM = frag_map()
    st = Stamps(A, opt.get('stamps'))
    A(f'''
    s_lshr_b32 {sH}, s2, 3
    v_lshrrev_b32 v20, 6, v0
    v_and_b32 v21, 63, v0           ; lane
    s_nop 0
    v_readfirstlane_b32 {sW}, v20
    v_and_b32 v22, 15, v21          ; c / a / n
    v_lshrrev_b32 v23, 4, v21       ; g
    v_lshlrev_b32 {vL16}, 4, v21
    s_mov_b32 {sBud}, 400000
    s_mov_b32 {sSelLo}, 0x05040100
    s_mov_b32 {sSelHi}, 0x07060302
    ''')
    st.init()
    A(f'''
    v_lshrrev_b32 v26, 1, v23
    v_lshlrev_b32 v26, 4, v26       ; 16*(g>>1)
    v_and_b32 v27, 1, v23
    v_lshlrev_b32 v27, 2, v27       ; 4*(g&1)
    v_add_u32 v26, v26, v27         ; d0
    s_lshl_b32 {sT}, {sW}, 6
    v_lshlrev_b32 v27, 2, v22
    v_add_u32 v27, {sT}, v27        ; w*64 + c*4
    s_lshl_b32 {sT}, {sH}, 8
    v_lshlrev_b32 v24, 13, v26
    v_add3_u32 v24, v24, v27, {sT}
    s_lshl_b32 {sT}, {sH}, 17
    v_lshlrev_b32 v25, 10, v26
    v_add3_u32 v25, v25, v27, {sT}
    ''')
    A(f'''
    ; vInW
    s_lshl_b32 {sT}, {sW}, 14
    s_lshl_b32 {sT2}, {sH}, 8
    s_add_u32 {sT}, {sT}, {sT2}
    s_add_u32 {sT}, {sT}, {INBOX}
    v_lshrrev_b32 v26, 3, v22
    v_lshlrev_b32 v26, 13, v26
    v_bfe_u32 v27, v22, 2, 1
    v_lshlrev_b32 v27, 6, v27
    v_add3_u32 {vInW}, v26, v27, {sT}
    v_and_b32 v26, 1, v23
    v_lshlrev_b32 v26, 7, v26
    v_and_b32 v27, 3, v22
    v_lshlrev_b32 v27, 4, v27
    v_add3_u32 {vInW}, {vInW}, v26, v27
    v_lshrrev_b32 v26, 1, v23
    v_lshlrev_b32 v26, 3, v26
    v_add_u32 {vInW}, {vInW}, v26
    ; vInR
    s_lshl_b32 {sT}, {sH}, 13
    s_lshl_b32 {sT2}, {sW}, 6
    s_add_u32 {sT}, {sT}, {sT2}
    s_add_u32 {sT}, {sT}, {INBOX}
    v_and_b32 v26, 3, v22
    v_lshlrev_b32 v26, 9, v26
    v_lshlrev_b32 v27, 11, v23
    v_add3_u32 {vInR}, v26, v27, {sT}
    v_lshrrev_b32 v26, 2, v22
    v_lshlrev_b32 v26, 4, v26
    v_add_u32 {vInR}, {vInR}, v26
    s_lshl_b32 {sT}, {sH}, 8
    s_and_b32 {sT2}, {sW}, 1
    s_lshl_b32 {sT2}, {sT2}, 7
    s_add_u32 {sT}, {sT}, {sT2}
    s_lshr_b32 {sT2}, {sW}, 1
    s_lshl_b32 {sT2}, {sT2}, 6
    s_add_u32 {sT}, {sT}, {sT2}
    v_lshrrev_b32 v26, 1, v22
    v_lshlrev_b32 v26, 4, v26
    v_lshlrev_b32 v27, 2, v23
    v_add3_u32 {vMW}, v26, v27, {sT}
    v_and_b32 v26, 9, v22
    v_cmp_ne_u32 vcc, 0, v26
    v_mov_b32 v27, {OOB}
    v_cndmask_b32 {vMW}, {vMW}, v27, vcc
    s_lshr_b32 {sT}, {sW}, 1
    s_lshl_b32 {sT}, {sT}, 12
    s_lshl_b32 {sT2}, {sH}, 5
    s_add_u32 {sT}, {sT}, {sT2}
    s_and_b32 {sT2}, {sW}, 1
    s_lshl_b32 {sT2}, {sT2}, 4
    s_add_u32 {sT}, {sT}, {sT2}
    v_lshrrev_b32 v26, 1, v22
    v_lshlrev_b32 v26, 10, v26
    v_lshlrev_b32 v28, 2, v23
    v_add3_u32 v28, v26, v28, {sT}
    v_cndmask_b32 v28, v28, v27, vcc
    buffer_load_dword v29, v28, {S_M0}, 0 offen
    ; sentinels
    v_mov_b32 v{SENT}, -1
    v_mov_b32 v{SENT+1}, -1
    v_mov_b32 v{SENT+2}, -1
    v_mov_b32 v{SENT+3}, -1
    s_mov_b32 {sT}, 0x40000
    buffer_store_dwordx4 {vr(SENT,4)}, {vInR}, {S_WS}, 0 offen sc1
    buffer_store_dwordx4 {vr(SENT,4)}, {vInR}, {S_WS}, 0 offen offset:256 sc1
    buffer_store_dwordx4 {vr(SENT,4)}, {vInR}, {S_WS}, {sT} offen sc1
    buffer_store_dwordx4 {vr(SENT,4)}, {vInR}, {S_WS}, {sT} offen offset:256 sc1
    s_mov_b32 {sT}, {MBUF + 8192}
    buffer_store_dword v{SENT}, {vMW}, {S_WS}, {sT} offen sc1
    s_mov_b32 {sT}, {MBUF + 16384}
    buffer_store_dword v{SENT}, {vMW}, {S_WS}, {sT} offen sc1
    s_lshl_b32 {sT}, {sH}, 8
    s_lshl_b32 {sT2}, {sW}, 6
    s_add_u32 {sT}, {sT}, {sT2}
    v_lshlrev_b32 v26, 2, v21
    v_cmp_lt_u32 vcc, 15, v21
    v_cndmask_b32 v26, v26, v27, vcc
    v_mov_b32 v30, 0
    buffer_store_dword v30, v26, {S_WS}, {sT} offen sc1
    s_mov_b32 {sT}, {MBUF}
    s_waitcnt vmcnt(7)
    buffer_store_dword v29, {vMW}, {S_WS}, {sT} offen sc1
    s_lshl_b32 {sT}, {sW}, 10
    s_add_u32 {sT}, {sT}, {L_QK}
    v_lshrrev_b32 v26, 2, v22
    v_lshlrev_b32 v26, 7, v26
    v_and_b32 v27, 3, v22
    v_lshlrev_b32 v27, 2, v27
    v_add3_u32 {vQKw}, v26, v27, {sT}
    v_and_b32 v26, 1, v23
    v_lshlrev_b32 v26, 6, v26
    v_lshrrev_b32 v27, 1, v23
    v_lshlrev_b32 v27, 5, v27
    v_add3_u32 {vQKw}, {vQKw}, v26, v27
    v_lshlrev_b32 v26, 7, v23
    v_and_b32 v27, 7, v22
    v_lshlrev_b32 v27, 4, v27
    v_add_u32 v26, v26, v27
    v_add_u32 {vQKr}, {L_QK}, v26
    ; vOw = L_O + (4w+g)*128 + (n&7)*16
    s_lshl_b32 {sT}, {sW}, 9
    s_add_u32 {sT}, {sT}, {L_O}
    v_add_u32 {vOw}, {sT}, v26
    ; vVt = (c&3)*2048 + g*256 + (4w + (c>>2))*16
    s_lshl_b32 {sT}, {sW}, 6
    v_and_b32 v26, 3, v22
    v_lshlrev_b32 v26, 11, v26
    v_lshlrev_b32 v27, 8, v23
    v_add3_u32 {vVt}, v26, v27, {sT}
    v_lshrrev_b32 v26, 2, v22
    v_lshlrev_b32 v26, 4, v26
    v_add_u32 {vVt}, {vVt}, v26
    v_mov_b32 {vKd}, {vL16}
    ; vIdx
    v_and_b32 v26, 8, v21
    v_cmp_ne_u32 vcc, 0, v26
    v_mov_b32 v26, 0x44444444
    v_mov_b32 v27, 0xEEEEEEEE
    v_cndmask_b32 {vIdx}, v26, v27, vcc
    ; vFr
    s_lshl_b32 {sT}, {sW}, 15
    s_add_u32 {sT}, {sT}, {L_FR}
    v_add_u32 {vFr}, {sT}, {vL16}
    ; selector
    v_and_b32 v26, 1, v22
    v_cmp_ne_u32 vcc, 0, v26
    v_mov_b32 v26, 0x3f80
    v_mov_b32 v27, 0x3f800000
    v_cndmask_b32 v26, v26, v27, vcc
    v_bfe_u32 v27, v22, 1, 2
    ''')
    for r in range(4):
        A(f'''v_cmp_eq_u32 vcc, {r}, v27
        v_cndmask_b32 v{SEL+r}, 0, v26, vcc''')
    A(f'''
    s_waitcnt vmcnt(0)
    s_barrier
    s_cmp_lg_u32 {sW}, 0
    s_cbranch_scc1 ch_noarr
    s_lshl_b32 {sT}, {sXCC}, 3
    s_mov_b64 s[30:31], 1
    s_lshl_b64 s[30:31], s[30:31], {sT}
    v_mov_b32 v26, s30
    v_mov_b32 v27, s31
    v_mov_b32 v28, {OOB}
    v_cmp_eq_u32 vcc, 0, v21
    v_cndmask_b32 v28, v28, 0, vcc
    buffer_atomic_add_x2 v[26:27], v28, {S_DBG}, 0 offen sc1
    ch_noarr:
    ''')
    A.reset_track()
    groups = []
    for k in range(8):
        for mat in 'qkv':
            groups.append((mat, k))
    for p in range(4):
        for kp in range(2):
            groups.append(('o', p, kp))
    STG = 32
    srd = {'q': S_WQ, 'k': S_WK, 'v': S_WV}
    def issue(gi):
        g = groups[gi]
        b = STG + 16 * (gi % 4)
        for r in range(8):
            if g[0] == 'o':
                so = (64 * g[2] + DLIST[r]) * 1024 + g[1] * 256
                A(f's_mov_b32 {sT}, {so}')
                A(f'buffer_load_dword v{b+2*r}, v25, {S_WO}, {sT} offen', tag=gi)
                A(f'buffer_load_dword v{b+2*r+1}, v25, {S_WO}, {sT} offen offset:1024', tag=gi)
            else:
                so = (64 * g[1] + DLIST[r]) * 8192
                A(f's_mov_b32 {sT}, {so}')
                A(f's_mov_b32 {sT2}, {so + 8192}')
                A(f'buffer_load_dword v{b+2*r}, v24, {srd[g[0]]}, {sT} offen', tag=gi)
                A(f'buffer_load_dword v{b+2*r+1}, v24, {srd[g[0]]}, {sT2} offen', tag=gi)
    def process(gi):
        g = groups[gi]
        b = STG + 16 * (gi % 4)
        A.wait_vm(gi)
        for T in (0, 1):
            key = (g[0], T, g[1]) if g[0] != 'o' else ('o', g[1], T, g[2])
            kind, loc = FM[key]
            sel = sSelLo if T == 0 else sSelHi
            t0 = 96 + 8 * T + 16 * (gi % 2)
            for r in range(8):
                dst = f'v{loc + r}' if kind == 'v' else f'v{t0 + r}'
                A(f'v_perm_b32 {dst}, v{b+2*r+1}, v{b+2*r}, {sel}')
            if kind == 'a':
                for r in range(8):
                    A(f'v_accvgpr_write_b32 a{loc + r}, v{t0 + r}')
            elif kind == 'lds':
                A(f'ds_write_b128 {vFr}, {vr(t0,4)} offset:{loc*2048}')
                A(f'ds_write_b128 {vFr}, {vr(t0+4,4)} offset:{loc*2048+1024}')
                A('s_waitcnt lgkmcnt(0)')
    n = len(groups)
    for gi in range(3): issue(gi)
    for gi in range(n):
        if gi + 3 < n: issue(gi + 3)
        process(gi)
    st.bmark(0)
    A(f'''
    v_mov_b32 v28, 0
    ch_initpoll:
    buffer_load_dwordx2 v[26:27], v28, {S_DBG}, 0 offen sc1
    s_sub_u32 {sBud}, {sBud}, 1
    s_cbranch_scc1 k_end
    s_waitcnt vmcnt(0)
    v_readfirstlane_b32 s30, v26
    v_readfirstlane_b32 s31, v27
    s_add_u32 {sT}, s30, s31
    s_lshr_b32 {sT2}, {sT}, 16
    s_add_u32 {sT}, {sT}, {sT2}
    s_lshr_b32 {sT2}, {sT}, 8
    s_add_u32 {sT}, {sT}, {sT2}
    s_and_b32 {sT}, {sT}, 0xff
    s_cmp_lg_u32 {sT}, 32
    s_cbranch_scc1 ch_initpoll
    s_lshl_b32 {sT}, {sXCC}, 3
    s_lshr_b64 s[30:31], s[30:31], {sT}
    s_and_b32 {sFlagV}, s30, 0xff
    ''')
    if opt.get('kvcheck', True):
        kv_wait(A, 14, 'ch_kv0')
    A(f'''
    s_mov_b32 s30, 0x3e0293ee
    s_mov_b32 s31, 0x3e0293ee
    s_mov_b32 {sStep}, 0
    s_mov_b32 {sPar}, 0
    s_mov_b32 {sParPrev}, 0x40000
    s_mov_b32 {sMrd}, {MBUF}
    s_mov_b32 {sMwr}, {MBUF + 8192}
    s_mov_b32 {sMre}, {MBUF + 16384}
    s_mov_b32 {sKb}, 0
    s_mov_b32 {sKd}, 16384
    s_lshl_b32 {sSeg}, {sH}, 13
    s_lshl_b32 {sSeg1}, {sH}, 12
    s_lshl_b32 {sT}, {sW}, 10
    s_add_u32 {sSeg1}, {sSeg1}, {sT}
    s_add_u32 {sSeg1}, {sSeg1}, {IMG}
    s_lshl_b32 {sKM}, {sH}, 12
    s_lshl_b32 {sT}, {sW}, 10
    s_add_u32 {sVM}, {sKM}, {sT}
    s_add_u32 {sVM}, {sVM}, {VM}
    s_add_u32 {sKM}, {sKM}, {KM - L_QK - 512}
    v_mov_b32 {vKt}, {vL16}
    ''')
    for s in range(2):
        for tau in range(2):
            A(f'''s_lshl_b32 {sT}, {sW}, 10
            s_add_u32 m0, {sT}, {L_KT + s * 8192 + tau * 4096}
            s_add_u32 {sT2}, {sSeg1}, {(2 * s + tau) * TS}
            buffer_load_dwordx4 {vKd}, {S_WS}, {sT2} offen sc1 lds''')
    for r in range(ACC, ACC + 24, 2): A(f'v_mov_b64 {vr(r,2)}, 0')
    for i in range(4):
        fr_read(A, i, i)
    A(f'''s_waitcnt vmcnt(0) lgkmcnt(0)
    s_barrier
    s_cmp_eq_u32 {sFlagV}, 32
    s_cbranch_scc0 ch_slow''')
    st.bmark(1)
    st.prep()
    if opt.get('force_slow'): A('s_branch ch_slow')
    chain_loop(A, FM, '', 'f', st, opt)
    A('ch_slow:')
    chain_loop(A, FM, 'sc1', 's', Stamps(A, False), opt)
    A('ch_fin:')
    if st.on:
        A(f'''s_lshl_b32 {sT}, {sH}, 2
        s_add_u32 {sT}, {sT}, {sW}
        s_lshl_b32 {sT}, {sT}, 6
        s_add_u32 {sT}, {sT}, {STAMP}
        v_mov_b32 v20, 0
        ''')
        for i in range(16):
            A(f'v_mov_b32 v21, s{84+i}\nbuffer_store_dword v21, v20, {S_WS}, {sT} offen offset:{4*i}')
    A('s_branch k_end')


def kv_wait(A, nmt, lab):
    A(f'''
    s_lshr_b32 {sT}, {sH}, 1
    s_lshl_b32 {sT}, {sT}, 6
    s_add_u32 {sT}, {sT}, {FLAG_KV}
    v_lshrrev_b32 v20, 2, {vL16}
    v_min_u32 v20, {4 * (nmt - 1)}, v20
    {lab}:
    buffer_load_dword v21, v20, {S_WS}, {sT} offen sc1
    s_sub_u32 {sBud}, {sBud}, 1
    s_cbranch_scc1 k_end
    s_waitcnt vmcnt(0)
    v_cmp_eq_u32 vcc, 0, v21
    s_cbranch_vccnz {lab}
    ''')


def fr_read(A, slot, bslot, tag=None):
    b = BUF + 8 * bslot
    A(f'ds_read_b128 {vr(b,4)}, {vFr} offset:{slot*2048}', tag=tag)
    A(f'ds_read_b128 {vr(b+4,4)}, {vFr} offset:{slot*2048+1024}', tag=tag)


def chain_loop(A, FM, sc, sfx, st, opt):
    def B(key):
        kind, loc = FM[key]
        if kind == 'lds': return vr(BUF + 8 * (loc % 4), 8)
        return vr(loc, 8, kind)
    def sm(d, a, key):
        A(f'v_smfmac_f32_16x16x64_bf16 {vr(d,4)}, {vr(a,4)}, {B(key)}, {vIdx}')
    def gload(k, tag):
        so = sMrd if k < 4 else sMrd2
        A(f'buffer_load_dwordx4 {vr(AF+4*k,4)}, {vL16}, {S_WS}, {so} offen offset:{(k&3)*1024} sc1', tag=tag)
    def check2(k):
        b = AF + 4 * k
        return [f'v_max3_u32 v{TMP}, v{b}, v{b+1}, v{b+2}',
                f'v_max3_u32 v{TMP+1}, v{b+3}, v{b+4}, v{b+5}',
                f'v_max3_u32 v{TMP}, v{TMP}, v{b+6}, v{b+7}',
                f'v_max_u32 v{TMP}, v{TMP}, v{TMP+1}',
                f'v_cmp_eq_u32 vcc, -1, v{TMP}']
    L = lambda n: f'{n}_{sfx}'
    A.reset_track()
    A(f'{L("ch_step")}:')
    A(f's_add_u32 {sMrd2}, {sMrd}, 4096')
    A(f'{L("ch_g0")}:')
    if st.on: A('s_add_u32 s98, s98, 1')
    for k in range(4): gload(k, ('g', k // 2))
    A(f's_sub_u32 {sBud}, {sBud}, 1\ns_cbranch_scc1 k_end')
    A.wait_vm(('g', 0))
    for t in check2(0): A(t)
    A(f's_cbranch_vccnz {L("ch_g0")}')
    for k in range(4, 8): gload(k, ('g', k // 2))
    st.mark(0)
    A('s_waitcnt lgkmcnt(0)')
    qk = [('q', 0), ('q', 1), ('k', 0), ('k', 1)]
    retry = []
    for pr in range(4):
        fill = []
        if pr < 3:
            fill = [('wait', ('g', pr + 1))] + check2(2 * pr + 2)
        for kk in range(2):
            k = 2 * pr + kk
            if k in (2, 4): A.wait_lg(('fr', k))
            for i, (mat, T) in enumerate(qk):
                sm(ACC + 4 * i, AF + 4 * k, (mat, T, k))
                if k in (0, 2):
                    fr_read(A, 4 * (k // 2 + 1) + i, i, tag=('fr', k + 2))
                if k == 4:
                    for j in range(2):
                        f = 2 * i + j
                        A(f'ds_read_b128 {vr(BUF+4*f,4)}, {vKt} offset:{f*1024}', tag='kt')
                if kk == 1 and fill:
                    for _ in range(2):
                        if fill:
                            f = fill.pop(0)
                            if isinstance(f, tuple): A.wait_vm(f[1])
                            else: A(f)
        if pr < 3:
            rl, back = L(f'ch_re{pr}'), L(f'ch_bk{pr}')
            A(f's_cbranch_vccnz {rl}\n{back}:')
            retry.append((pr + 1, rl, back))
        if pr == 2:
            A(f'''
            s_add_u32 {sT}, {sSeg}, {VW}
            buffer_load_dwordx4 {vr(VT,4)}, {vVt}, {S_WS}, {sT} offen sc1
            buffer_load_dwordx4 {vr(VT+4,4)}, {vVt}, {S_WS}, {sT} offen offset:1024 sc1
            ''', tag='vt')
    st.mark(1)
    vq = [(k, T) for k in range(8) for T in (0, 1)]
    def vsm(n=1):
        for _ in range(n):
            k, T = vq.pop(0)
            sm(ACV + 4 * T, AF + 4 * k, ('v', T, k))
    def halfsum(d):
        return [f'v_permlane32_swap_b32 v{d}, v{d+2}',
                f'v_permlane32_swap_b32 v{d+1}, v{d+3}',
                f'v_pk_add_f32 {vr(d,2)}, {vr(d,2)}, {vr(d+2,2)}']
    vsm(2)
    for t in halfsum(ACC): A(t)
    vsm(1)
    for t in halfsum(ACC + 4): A(t)
    A(f'v_cvt_pk_bf16_f32 v{TMP}, v{ACC}, v{ACC+4}\nv_cvt_pk_bf16_f32 v{TMP+1}, v{ACC+1}, v{ACC+5}')
    A(f'ds_write2_b32 {vQKw}, v{TMP}, v{TMP+1} offset0:0 offset1:4')
    vsm(1)
    for t in halfsum(ACC + 8): A(t)
    for t in halfsum(ACC + 12): A(t)
    A(f'v_cvt_pk_bf16_f32 v{TMP+2}, v{ACC+8}, v{ACC+12}\nv_cvt_pk_bf16_f32 v{TMP+3}, v{ACC+9}, v{ACC+13}')
    A(f'ds_write2_b32 {vQKw}, v{TMP+2}, v{TMP+3} offset0:128 offset1:132')
    vsm(2)
    if not opt.get('nokmvm'):
        A(f'''buffer_store_dword v{TMP+2}, {vQKw}, {S_WS}, {sKM} offen offset:512 {opt.get('kmsc','sc1')}
        buffer_store_dword v{TMP+3}, {vQKw}, {S_WS}, {sKM} offen offset:528 {opt.get('kmsc','sc1')}''')
    vsm(2)
    st.mark(2)
    A('s_waitcnt lgkmcnt(0)\ns_barrier')
    st.mark(3)
    QF, KF = ACC, AF
    for kq in range(4):
        A(f'ds_read_b128 {vr(QF+4*kq,4)}, {vQKr} offset:{kq*1024}', tag=('q', kq))
        A(f'ds_read_b128 {vr(KF+4*kq,4)}, {vQKr} offset:{kq*1024+512}', tag=('km', kq))
    vsm(4)
    A(f'''
    buffer_store_dwordx4 {vr(SENT,4)}, {vInR}, {S_WS}, {sParPrev} offen {sc}
    buffer_store_dwordx4 {vr(SENT,4)}, {vInR}, {S_WS}, {sParPrev} offen offset:256 {sc}
    buffer_store_dword v{SENT}, {vMW}, {S_WS}, {sMre} offen {sc}
    s_lshl_b32 {sT}, {sW}, 10
    s_add_u32 m0, {sT}, {sKd}
    s_add_u32 {sT2}, {sSeg1}, {4 * TS}
    buffer_load_dwordx4 {vKd}, {S_WS}, {sT2} offen sc1 lds
    s_add_u32 m0, m0, 4096
    s_add_u32 {sT2}, {sT2}, {TS}
    buffer_load_dwordx4 {vKd}, {S_WS}, {sT2} offen sc1 lds
    ''')
    if opt.get('touch', False):
        A(f'''
        s_mov_b32 m0, {L_DUM}
        s_lshl_b32 {sT}, {sW}, 11
        s_add_u32 {sT}, {sT}, {sSeg}
        s_add_u32 {sT}, {sT}, {VW + 0x40000}
        v_lshlrev_b32 v{TMP}, 1, {vL16}
        buffer_load_dword v{TMP}, {S_WS}, {sT} offen sc1 lds
        ''')
    st.mark(4)
    S0, S1, SM_ = TMP, TMP + 4, TMP + 8
    for kq in range(4):
        A.wait_lg(('q', kq))
        c = lambda d: '0' if kq == 0 else vr(d, 4)
        A(f'v_mfma_f32_16x16x32_bf16 {vr(S0,4)}, {vr(BUF+4*kq,4)}, {vr(QF+4*kq,4)}, {c(S0)}')
        A(f'v_mfma_f32_16x16x32_bf16 {vr(S1,4)}, {vr(BUF+16+4*kq,4)}, {vr(QF+4*kq,4)}, {c(S1)}')
        A.wait_lg(('km', kq))
        A(f'v_mfma_f32_16x16x32_bf16 {vr(SM_,4)}, {vr(KF+4*kq,4)}, {vr(QF+4*kq,4)}, {c(SM_)}')
    vsm(4)
    assert not vq
    for i in range(4): fr_read(A, 12 + i, i, tag='fo')
    st.mark(5)
    M0, M1, M2, M3 = ACC + 10, ACC + 11, ACC + 12, ACC + 13
    A(f'''
    v_max3_f32 v{M0}, v{TMP}, v{TMP+1}, v{TMP+2}
    v_max3_f32 v{M1}, v{TMP+3}, v{TMP+4}, v{TMP+5}
    v_max3_f32 v{M2}, v{TMP+6}, v{TMP+7}, v{TMP+8}
    v_max3_f32 v{M3}, v{TMP+9}, v{TMP+10}, v{TMP+11}
    v_max3_f32 v{M0}, v{M0}, v{M1}, v{M2}
    v_max_f32 v{M0}, v{M0}, v{M3}
    v_mov_b32 v{M1}, v{M0}
    v_permlane32_swap_b32 v{M0}, v{M1}
    v_max_f32 v{M0}, v{M0}, v{M1}
    v_mov_b32 v{M1}, v{M0}
    v_permlane16_swap_b32 v{M0}, v{M1}
    v_max_f32 v{M0}, v{M0}, v{M1}
    v_mul_f32 v{M0}, s30, v{M0}
    ''')
    for i in range(0, 12, 2):
        A(f'v_pk_fma_f32 {vr(TMP+i,2)}, {vr(TMP+i,2)}, {sC}, {vr(M0,2)} op_sel_hi:[1,1,0] neg_lo:[0,0,1] neg_hi:[0,0,1]')
    for i in range(12):
        A(f'v_exp_f32 v{TMP+i}, v{TMP+i}')
    P, VMB = ACC, ACC + 6
    for i in range(6):
        A(f'v_cvt_pk_bf16_f32 v{P+i}, v{TMP+2*i}, v{TMP+2*i+1}')
    for i in range(4):
        A(f'v_cvt_pk_bf16_f32 v{VMB+i}, v{ACV+2*i}, v{ACV+2*i+1}')
    if not opt.get('nokmvm'):
        A(f'buffer_store_dwordx4 {vr(VMB,4)}, {vL16}, {S_WS}, {sVM} offen {opt.get("kmsc","sc1")}')
    A(f's_cmp_eq_u32 {sStep}, 63\ns_cbranch_scc1 {L("ch_last")}')
    A(f'''
    v_pk_add_f32 {vr(M2,2)}, {vr(TMP+8,2)}, {vr(TMP+10,2)}
    v_pk_add_f32 {vr(M0,2)}, {vr(TMP,2)}, {vr(TMP+2,2)}
    v_pk_add_f32 {vr(TMP+8,2)}, {vr(TMP+4,2)}, {vr(TMP+6,2)}
    ''')
    st.mark(6)
    A.wait_vm('vt')
    O0 = TMP
    A(f'''
    v_mfma_f32_16x16x32_bf16 {vr(O0,4)}, {vr(VT,4)}, {vr(P,4)}, 0
    v_mfma_f32_16x16x32_bf16 {vr(O0+4,4)}, {vr(VT+4,4)}, {vr(P,4)}, 0
    v_mfma_f32_16x16x16_bf16 {vr(O0,4)}, {vr(VMB,2)}, {vr(P+4,2)}, {vr(O0,4)}
    v_mfma_f32_16x16x16_bf16 {vr(O0+4,4)}, {vr(VMB+2,2)}, {vr(P+4,2)}, {vr(O0+4,4)}
    v_pk_add_f32 {vr(M0,2)}, {vr(M0,2)}, {vr(TMP+8,2)}
    v_add_f32 v{M2}, v{M2}, v{M3}
    v_add_f32 v{M0}, v{M0}, v{M1}
    v_fma_f32 v{M0}, v{M2}, 0.5, v{M0}
    v_mov_b32 v{M1}, v{M0}
    v_permlane32_swap_b32 v{M0}, v{M1}
    v_add_f32 v{M0}, v{M0}, v{M1}
    v_mov_b32 v{M1}, v{M0}
    v_permlane16_swap_b32 v{M0}, v{M1}
    v_add_f32 v{M0}, v{M0}, v{M1}
    v_rcp_f32 v{M0}, v{M0}
    ''')
    for i in range(0, 8, 2):
        A(f'v_pk_mul_f32 {vr(O0+i,2)}, {vr(O0+i,2)}, {vr(M0,2)} op_sel_hi:[1,0]')
    OP = TMP + 8
    for i in range(4):
        A(f'v_cvt_pk_bf16_f32 v{OP+i}, v{O0+i}, v{O0+4+i}')
    A(f'ds_write_b128 {vOw}, {vr(OP,4)}')
    st.mark(7)
    for r in range(AF, AF + 32, 2): A(f'v_mov_b64 {vr(r,2)}, 0')
    A('s_waitcnt lgkmcnt(0)\ns_barrier')
    OA = ACC
    A(f'ds_read_b128 {vr(OA,4)}, {vL16} offset:{L_O}', tag='o0')
    A(f'ds_read_b128 {vr(OA+4,4)}, {vL16} offset:{L_O+1024}', tag='o1')
    A(f'''
    s_add_u32 {sP1}, {sPar}, 0x10000
    s_add_u32 {sP2}, {sPar}, 0x20000
    s_add_u32 {sP3}, {sPar}, 0x30000
    ''')
    st.mark(8)
    sP = [sPar, sP1, sP2, sP3]
    def wo_out(p):
        d0, d1 = AF + 8 * p, AF + 8 * p + 4
        return halfsum(d0) + halfsum(d1) + [
            f'v_cvt_pk_bf16_f32 v{d0+2}, v{d0}, v{d1}',
            f'v_cvt_pk_bf16_f32 v{d0+3}, v{d0+1}, v{d1+1}',
            f'buffer_store_dwordx2 {vr(d0+2,2)}, {vInW}, {S_WS}, {sP[p]} offen {sc}']
    pend = []
    for p in range(4):
        for kp in range(2):
            if p == 0: A.wait_lg('o%d' % kp)
            for T in range(2):
                sm(AF + 8 * p + 4 * T, OA + 4 * kp, ('o', p, T, kp))
                if p == 0: pass
                if p >= 1 and not (kp == 0 and T == 0):
                    for _ in range(3):
                        if pend: A(pend.pop(0))
        while pend: A(pend.pop(0))
        pend = wo_out(p)
        if p == 0:
            for i in range(4): fr_read(A, i, i)
    while pend: A(pend.pop(0))
    st.mark(9)
    IB = ACC + 8
    RD = TMP
    A(f'{L("ch_r0")}:')
    if st.on: A('s_add_u32 s99, s99, 1')
    A(f'''
    buffer_load_dwordx4 {vr(IB,4)}, {vInR}, {S_WS}, {sPar} offen sc1
    buffer_load_dwordx4 {vr(IB+4,4)}, {vInR}, {S_WS}, {sPar} offen offset:256 sc1
    s_sub_u32 {sBud}, {sBud}, 1
    s_cbranch_scc1 k_end
    s_waitcnt vmcnt(0)
    v_mfma_f32_16x16x32_bf16 {vr(RD,4)}, {vr(IB,4)}, {vr(SEL,4)}, 0
    v_mfma_f32_16x16x32_bf16 {vr(RD,4)}, {vr(IB+4,4)}, {vr(SEL,4)}, {vr(RD,4)}
    v_max3_u32 v{TMP+4}, v{IB}, v{IB+2}, v{IB+4}
    v_max_u32 v{TMP+4}, v{TMP+4}, v{IB+6}
    v_cmp_eq_u32 vcc, -1, v{TMP+4}
    s_cbranch_vccnz {L("ch_r0")}
    v_pk_add_f32 {vr(RD,2)}, {vr(RD,2)}, {vr(RD+2,2)}
    v_add_f32 v{RD}, v{RD}, v{RD+1}
    v_mov_b32_dpp v{RD+1}, v{RD} quad_perm:[1,0,3,2] row_mask:0xf bank_mask:0xf
    v_cvt_pk_bf16_f32 v{RD}, v{RD}, v{RD+1}
    buffer_store_dword v{RD}, {vMW}, {S_WS}, {sMwr} offen {sc}
    ''')
    st.mark(10)
    A(f'''
    s_add_u32 {sStep}, {sStep}, 1
    s_lshl_b32 {sT}, {sH}, 4
    s_lshl_b32 {sT2}, {sW}, 2
    s_add_u32 {sT}, {sT}, {sT2}
    v_mov_b32 v{TMP+4}, {sStep}
    v_mov_b32 v{TMP+5}, 0
    {'' if opt.get('noprog') else f'buffer_store_dword v{TMP+4}, v{TMP+5}, {S_WS}, {sT} offen sc1'}
    s_mov_b32 {sParPrev}, {sPar}
    s_xor_b32 {sPar}, {sPar}, 0x40000
    s_mov_b32 {sT}, {sMre}
    s_mov_b32 {sMre}, {sMrd}
    s_mov_b32 {sMrd}, {sMwr}
    s_mov_b32 {sMwr}, {sT}
    s_mov_b32 {sKd}, {sKb}
    s_add_u32 {sKb}, {sKb}, 8192
    s_cmp_eq_u32 {sKb}, 24576
    s_cselect_b32 {sKb}, 0, {sKb}
    s_add_u32 {sSeg}, {sSeg}, {0 if opt.get('fixseg') else 0x40000}
    s_add_u32 {sSeg1}, {sSeg1}, {2 * TS}
    s_add_u32 {sKM}, {sKM}, 0x20000
    s_add_u32 {sVM}, {sVM}, 0x20000
    v_add_u32 {vKt}, {sKb}, {vL16}
    ''')
    for r in range(ACC, ACC + 24, 2): A(f'v_mov_b64 {vr(r,2)}, 0')
    st.flush(11)
    if opt.get('kvcheck', True):
        A(f's_cmp_eq_u32 {sStep}, 53\ns_cbranch_scc0 {L("ch_step")}')
        kv_wait(A, 16, L('ch_kv1'))
    A(f's_branch {L("ch_step")}')
    for pr, rl, back in retry:
        A(f'{rl}:')
        gload(2 * pr, None); gload(2 * pr + 1, None)
        A(f's_sub_u32 {sBud}, {sBud}, 1\ns_cbranch_scc1 k_end\ns_waitcnt vmcnt(0)')
        for t in check2(2 * pr): A(t)
        A(f's_cbranch_vccnz {rl}\ns_branch {back}')
    A(f'''{L("ch_last")}:
    s_lshl_b32 {sT}, {sH}, 4
    s_lshl_b32 {sT2}, {sW}, 2
    s_add_u32 {sT}, {sT}, {sT2}
    v_mov_b32 v{TMP+4}, 64
    v_mov_b32 v{TMP+5}, 0
    s_waitcnt vmcnt(0)
    buffer_store_dword v{TMP+4}, v{TMP+5}, {S_WS}, {sT} offen sc1
    s_branch ch_fin
    ''')
```

```python
from asmlib import Asm, vr
from chain import *

sQ, sW_, sT, sT2, sBud = 's3', 's4', 's6', 's7', 's8'
sTT, sIdx, sMt, sG, sRnd, sIsV, sRelu, sOut, sStr, sKo, sKs, sCnt, sFlg = [f's{i}' for i in range(9, 22)]
sSelLo, sSelHi = 's22', 's23'
S_W = 's[24:27]'
sNeedLN, sT3, sT4 = 's28', 's29', 's30'

XF = 16
F = [32, 128]
R = [96, 64]
LN = 128


def worker_role(A, opt):
    A(f'''
    s_lshr_b32 {sTT}, s2, 3
    s_sub_u32 {sIdx}, {sQ}, 1
    s_lshl_b32 {sIdx}, {sIdx}, 5
    s_add_u32 {sIdx}, {sIdx}, {sTT}
    v_lshrrev_b32 v4, 6, v0
    v_and_b32 v1, 63, v0
    s_nop 0
    v_readfirstlane_b32 {sW_}, v4
    v_and_b32 v2, 15, v1
    v_lshrrev_b32 v3, 4, v1
    v_lshlrev_b32 v15, 4, v1
    s_mov_b32 {sBud}, 200000
    s_mov_b32 {sSelLo}, 0x05040100
    s_mov_b32 {sSelHi}, 0x07060302
    ; g = idx / 14, mt = idx % 14
    s_mul_i32 {sG}, {sIdx}, 4682
    s_lshr_b32 {sG}, {sG}, 16
    s_mul_i32 {sT}, {sG}, 14
    s_sub_u32 {sMt}, {sIdx}, {sT}
    s_mov_b32 {sRnd}, 0
    s_mov_b32 {sNeedLN}, 1
    v_lshlrev_b32 v4, 1, v3
    v_xor_b32 v4, v4, v2
    v_lshlrev_b32 v5, 8, v3
    v_lshl_add_u32 v12, v4, 4, v5
    v_xor_b32 v13, 0x80, v12
    v_add_u32 v13, 8192, v13
    v_lshlrev_b32 v14, 10, v3
    v_lshl_add_u32 v14, v2, 4, v14
    ''')
    phase1(A, opt)
    phase2(A, opt)


def phase1(A, opt):
    A('w_task:')
    A(f'''
    s_mov_b32 {sIsV}, 0
    s_mov_b32 {sRelu}, 0x80008000
    s_mov_b32 {sStr}, 8192
    s_mov_b32 s26, 4194304
    s_mov_b32 s27, 0x00020000
    s_mul_i32 {sOut}, {sMt}, {8 * TS}
    s_add_u32 {sOut}, {sOut}, {IMG}
    s_cmp_lt_u32 {sG}, 16
    s_cbranch_scc0 w_tq
    ; KV
    s_lshl_b32 {sT}, {sG}, 1
    s_lshr_b32 {sT2}, {sW_}, 1
    s_add_u32 {sT}, {sT}, {sT2}        ; head
    s_lshl_b32 {sKo}, {sT}, 8
    s_lshl_b32 {sFlg}, {sG}, 6
    s_lshl_b32 {sT2}, {sMt}, 2
    s_add_u32 {sFlg}, {sFlg}, {sT2}
    s_add_u32 {sFlg}, {sFlg}, {FLAG_KV}
    s_and_b32 {sIsV}, {sW_}, 1
    s_cbranch_scc1 w_tv
    s_mov_b32 s24, s44
    s_mov_b32 s25, s45
    s_lshl_b32 {sT}, {sT}, 12
    s_add_u32 {sOut}, {sOut}, {sT}
    s_branch w_tdone
    w_tv:
    s_mov_b32 s24, s48
    s_mov_b32 s25, s49
    s_lshl_b32 {sT}, {sT}, 13
    s_lshl_b32 {sOut}, {sMt}, 20
    s_add_u32 {sOut}, {sOut}, {sT}
    s_add_u32 {sOut}, {sOut}, {VW}
    s_branch w_tdone
    w_tq:
    s_sub_u32 {sT}, {sG}, 16
    s_lshl_b32 {sFlg}, {sMt}, 6
    s_lshl_b32 {sT2}, {sT}, 2
    s_add_u32 {sFlg}, {sFlg}, {sT2}
    s_add_u32 {sFlg}, {sFlg}, {FLAG_QF}
    s_add_u32 {sT}, {sT2}, {sW_}
    s_cmp_lt_u32 {sT}, 32
    s_cbranch_scc0 w_tf
    s_mov_b32 s24, s40
    s_mov_b32 s25, s41
    s_lshl_b32 {sKo}, {sT}, 8
    s_add_u32 {sT}, {sT}, 32
    s_lshl_b32 {sT}, {sT}, 12
    s_add_u32 {sOut}, {sOut}, {sT}
    s_branch w_tdone
    w_tf:
    s_mov_b32 s24, s68
    s_mov_b32 s25, s69
    s_mov_b32 s26, 1409024
    s_mov_b32 {sStr}, 2752
    s_mov_b32 {sRelu}, 0
    s_sub_u32 {sT2}, {sT}, 32
    s_lshl_b32 {sKo}, {sT2}, 8
    s_add_u32 {sT2}, {sT}, 64
    s_lshl_b32 {sT2}, {sT2}, 12
    s_add_u32 {sOut}, {sOut}, {sT2}
    s_cmp_eq_u32 {sT}, 43
    s_cselect_b32 {sIsV}, 2, 0
    w_tdone:
    s_lshl_b32 {sKs}, {sStr}, 5
    s_lshl_b32 {sT}, {sStr}, 3
    v_mul_lo_u32 v4, v3, {sT}
    v_lshl_add_u32 v4, v2, 4, v4
    ''')
    for j in range(1, 8):
        A(f'v_add_u32 v{4+j}, {sStr}, v{3+j}')
    A.reset_track()
    A(f's_cmp_eq_u32 {sNeedLN}, 0\ns_cbranch_scc1 w_nox')
    A(f'''
    v_lshrrev_b32 v16, 3, v1
    v_and_b32 v17, 7, v1
    v_lshlrev_b32 v18, 10, v16
    v_lshl_add_u32 v18, v17, 4, v18
    s_lshl_b32 {sT}, {sMt}, 17
    s_lshl_b32 {sT2}, {sW_}, 15
    s_add_u32 {sT}, {sT}, {sT2}
    ''')
    for rg in range(4):
        for i in range(8):
            A(f'buffer_load_dwordx4 {vr(LN + 32*rg + 4*i, 4)}, v18, {S_X}, {sT} offen offset:{128*i}')
        if rg < 3: A(f's_add_u32 {sT}, {sT}, 8192')
    A('w_nox:')
    def wload(buf):
        return [f'buffer_load_dwordx4 {vr(R[buf] + 4*j, 4)}, v{4+j}, {S_W}, {sKo} offen' for j in range(8)] + \
               [f's_add_u32 {sKo}, {sKo}, {sKs}']
    for t in wload(0) + wload(1): A(t)
    A(f's_cmp_eq_u32 {sNeedLN}, 0\ns_cbranch_scc1 w_noln')
    A(f'''
    v_lshlrev_b32 v19, 1, v17
    v_xor_b32 v19, v19, v16
    v_lshlrev_b32 v19, 4, v19
    v_and_b32 v20, 3, v17
    v_lshl_add_u32 v19, v20, 8, v19
    v_lshrrev_b32 v20, 2, v17
    v_lshl_add_u32 v19, v20, 13, v19
    s_lshl_b32 {sT}, {sW_}, 11
    v_add_u32 v19, {sT}, v19
    v_xor_b32 v20, 0x80, v19
    v_add_u32 v21, 0x10000, v19
    v_add_u32 v22, 0x10000, v20
    v_mov_b32 v23, 0x3f803f80
    s_mov_b32 {sT3}, 0xffff0000
    s_barrier
    ''')
    def red8(v, t):
        for d in ('quad_perm:[1,0,3,2]', 'quad_perm:[2,3,0,1]', 'row_half_mirror'):
            A(f'v_add_f32_dpp v{v}, v{v}, v{v} {d} row_mask:0xf bank_mask:0xf')
    for rg in range(4):
        b = LN + 32 * rg
        A(f's_waitcnt vmcnt({16 + 8 * (3 - rg)})')
        for i in range(32):
            acc = 24 + (i & 1)
            A(f'v_dot2_f32_bf16 v{acc}, v{b+i}, v23, ' + ('0' if i < 2 else f'v{acc}'))
        A('v_add_f32 v24, v24, v25')
        red8(24, 25)
        A(f'''
        v_mul_f32 v24, 0x3b000000, v24       ; mean
        v_cvt_pk_bf16_f32 v26, v24, v24
        v_and_b32 v26, {sT3}, v26            ; m_b
        v_sub_f32 v25, v24, v26              ; mean - m_b
        ''')
        for i in range(32):
            t = 32 + 2 * (i & 7)
            acc = 28 + 2 * (i & 1)
            A(f'''v_lshlrev_b32 v{t}, 16, v{b+i}
            v_and_b32 v{t+1}, {sT3}, v{b+i}
            v_pk_add_f32 {vr(t,2)}, {vr(t,2)}, {vr(26,2)} op_sel_hi:[1,0] neg_lo:[0,1] neg_hi:[0,1]''')
            if i < 2: A(f'v_pk_mul_f32 {vr(acc,2)}, {vr(t,2)}, {vr(t,2)}')
            else: A(f'v_pk_fma_f32 {vr(acc,2)}, {vr(t,2)}, {vr(t,2)}, {vr(acc,2)}')
            A(f'v_cvt_pk_bf16_f32 v{b+i}, v{t}, v{t+1}')
        A(f'''v_pk_add_f32 v[28:29], v[28:29], v[30:31]
        v_add_f32 v28, v28, v29''')
        red8(28, 29)
        A(f'''
        v_mul_f32 v28, 0x3b000000, v28
        v_fma_f32 v28, -v25, v25, v28
        v_max_f32 v28, 0, v28
        v_cvt_pk_bf16_f32 v28, v28, v28
        v_and_b32 v28, {sT3}, v28
        v_add_f32 v28, 0x3727c5ac, v28
        v_cvt_pk_bf16_f32 v28, v28, v28
        v_and_b32 v28, {sT3}, v28
        v_sqrt_f32 v28, v28
        s_nop 0
        v_cvt_pk_bf16_f32 v28, v28, v28
        v_and_b32 v28, {sT3}, v28
        v_rcp_f32 v26, v28
        ''')
        for i in range(32):
            t = 32 + 2 * (i & 7)
            A(f'''v_lshlrev_b32 v{t}, 16, v{b+i}
            v_and_b32 v{t+1}, {sT3}, v{b+i}
            v_pk_mul_f32 {vr(t,2)}, {vr(t,2)}, {vr(26,2)} op_sel_hi:[1,0]
            v_cvt_pk_bf16_f32 v{b+i}, v{t}, v{t+1}''')
            if i & 3 == 3:
                ii = i >> 2
                ad = 19 + (rg & 1) + (2 if ii >= 4 else 0)
                A(f'ds_write_b128 v{ad}, {vr(b + 4*ii, 4)} offset:{(ii & 3) * 16384 + (rg >> 1) * 1024}')
    A('s_waitcnt lgkmcnt(0)\ns_barrier\nw_noln:')
    A(f's_cmp_eq_u32 {sIsV}, 2\ns_cbranch_scc1 w_epi_done')
    def perms(src, dst):
        o = []
        for T in range(8):
            for i in range(4):
                o.append(f'v_perm_b32 v{F[dst] + 4*T + i}, v{R[src] + (2*i+1)*4 + (T>>1)}, v{R[src] + 2*i*4 + (T>>1)}, {sSelHi if T & 1 else sSelLo}')
        return o
    A('v_mov_b32 v160, v12\nv_mov_b32 v161, v13')
    A(f'ds_read_b128 {vr(XF,4)}, v160\nds_read_b128 {vr(XF+4,4)}, v160 offset:1024')
    A('s_waitcnt vmcnt(8)')
    for t in perms(0, 0): A(t)
    for t in wload(0): A(t)
    A(f's_cmp_eq_u32 {sIsV}, 1\ns_cbranch_scc1 w_gemm_v')
    def kstep(par, first, isV):
        fill = ['s_waitcnt vmcnt(8)'] + perms(1 - par, 1 - par) + wload(1 - par)
        for tt in range(8):
            A('s_waitcnt lgkmcnt(1)')
            x = vr(XF + 4 * (tt & 3), 4)
            for T in range(8):
                d = vr((tt * 8 + T) * 4, 4, 'a')
                f = vr(F[par] + 4 * T, 4)
                a, b = (x, f) if isV else (f, x)
                A(f'v_mfma_f32_16x16x32_bf16 {d}, {a}, {b}, {"0" if first else d}')
                if T == 0:
                    n = tt + 2
                    dst = vr(XF + 4 * (n & 3), 4)
                    if n < 8: A(f'ds_read_b128 {dst}, v{160 + par} offset:{n * 1024}')
                    elif par == 0: A(f'ds_read_b128 {dst}, v161 offset:{(n - 8) * 1024}')
                    else: A(f'ds_read_b128 {dst}, v160 offset:{16384 + (n - 8) * 1024}')
                elif fill: A(fill.pop(0))
        assert not fill
        if par == 1:
            A('v_add_u32 v160, 16384, v160\nv_add_u32 v161, 16384, v161')
    for isV in (0, 1):
        sfx = 'v' if isV else 'n'
        if isV: A('w_gemm_v:')
        kstep(0, True, isV); kstep(1, False, isV)
        A(f's_mov_b32 {sCnt}, 7\nw_loop_{sfx}:')
        kstep(0, False, isV); kstep(1, False, isV)
        A(f's_sub_u32 {sCnt}, {sCnt}, 1\ns_cmp_lg_u32 {sCnt}, 0\ns_cbranch_scc1 w_loop_{sfx}')
        A('s_waitcnt vmcnt(0) lgkmcnt(0)')
        n = 0
        if not isV:
            for tt in range(8):
                for r in range(4):
                    t = 32 + 12 * (n % 8); n += 1
                    for T in range(8):
                        A(f'v_accvgpr_read_b32 v{t + T}, a{(tt * 8 + T) * 4 + r}')
                    for i in range(4):
                        A(f'v_cvt_pk_bf16_f32 v{t + 8 + i}, v{t + 2*i}, v{t + 2*i + 1}')
                    for i in range(4):
                        A(f'v_pk_max_i16 v{t + 8 + i}, v{t + 8 + i}, {sRelu}')
                    A(f'buffer_store_dwordx4 {vr(t + 8, 4)}, v14, {S_WS}, {sOut} offen offset:{r * 256} sc1')
                A(f's_add_u32 {sOut}, {sOut}, {TS}')
            A('s_branch w_epi_done')
        else:
            for sg in range(4):
                for T in range(8):
                    t = 32 + 12 * (n % 8); n += 1
                    for i in range(8):
                        A(f'v_accvgpr_read_b32 v{t + i}, a{((2 * sg + (i >> 2)) * 8 + T) * 4 + (i & 3)}')
                    for i in range(4):
                        A(f'v_cvt_pk_bf16_f32 v{t + 8 + i}, v{t + 2*i}, v{t + 2*i + 1}')
                    A(f'buffer_store_dwordx4 {vr(t + 8, 4)}, v15, {S_WS}, {sOut} offen offset:{(T & 3) * 1024} sc1')
                    if T == 3: A(f's_add_u32 {sOut}, {sOut}, 4096')
                A(f's_add_u32 {sOut}, {sOut}, {0x40000 - 4096}')
    A('w_epi_done:')
    A(f'''
    s_cmp_lg_u32 {sRnd}, 0
    s_cbranch_scc1 w_initok
    v_mov_b32 v16, 0
    w_initpoll:
    buffer_load_dwordx2 v[18:19], v16, {S_DBG}, 0 offen sc1
    s_sub_u32 {sBud}, {sBud}, 1
    s_cbranch_scc1 k_end
    s_waitcnt vmcnt(0)
    v_readfirstlane_b32 {sT}, v18
    v_readfirstlane_b32 {sT2}, v19
    s_add_u32 {sT}, {sT}, {sT2}
    s_lshr_b32 {sT2}, {sT}, 16
    s_add_u32 {sT}, {sT}, {sT2}
    s_lshr_b32 {sT2}, {sT}, 8
    s_add_u32 {sT}, {sT}, {sT2}
    s_and_b32 {sT}, {sT}, 0xff
    s_cmp_lg_u32 {sT}, 32
    s_cbranch_scc1 w_initpoll
    w_initok:
    s_waitcnt vmcnt(0)
    s_barrier
    s_cmp_lg_u32 {sW_}, 0
    s_cbranch_scc1 w_noflag
    v_mov_b32 v16, 0
    v_mov_b32 v17, 1
    buffer_store_dword v17, v16, {S_WS}, {sFlg} offen sc1
    w_noflag:
    s_cmp_lg_u32 {sRnd}, 0
    s_cbranch_scc1 w_p1done
    s_mov_b32 {sRnd}, 1
    s_cmp_lt_u32 {sG}, 11
    s_cbranch_scc0 w_r2b
    s_add_u32 {sG}, {sG}, 16
    s_mov_b32 {sNeedLN}, 0
    s_branch w_task
    w_r2b:
    s_sub_u32 {sT}, {sIdx}, 154
    s_cmp_lt_u32 {sT}, 54
    s_cbranch_scc0 w_p1done
    s_and_b32 {sMt}, {sT}, 1
    s_add_u32 {sMt}, {sMt}, 14
    s_lshr_b32 {sG}, {sT}, 1
    s_branch w_task
    w_p1done:
    ''')


def phase2(A, opt):
    sSeg, sI, sTile, sC0, sRh = 's11', 's12', 's13', 's14', 's15'
    sA, sB = 's16', 's17'
    WH = 168
    A.reset_track()
    A(f'''
    s_lshr_b32 {sC0}, {sTT}, 1
    s_lshl_b32 {sC0}, {sC0}, 6
    s_and_b32 {sRh}, {sTT}, 1
    v_lshlrev_b32 v4, 13, v3
    v_lshl_add_u32 v4, v2, 2, v4
    v_add_u32 v4, {sC0}, v4
    v_add_u32 v5, 4096, v4
    s_lshl_b32 {sA}, {sW_}, 20
    s_mul_i32 {sB}, {sW_}, {352 * 1024}
    ''')
    NG = 43
    DEP = 6
    def issue(gi):
        b = 32 + 8 * (gi % (DEP + 1))
        srd, so = (S_WO, sA) if gi < 32 else (S_W2, sB)
        for j in range(8):
            A(f'buffer_load_dword v{b + j}, v{4 + (j >> 2)}, {srd}, {so} offen offset:{(j & 3) * 1024}', tag=gi)
        A(f's_add_u32 {so}, {so}, 32768')
    def process(gi):
        b = 32 + 8 * (gi % (DEP + 1))
        A.wait_vm(gi)
        t0 = 96 + 8 * (gi & 1) if gi < 32 else WH + 8 * (gi - 32)
        for T in range(2):
            for i in range(4):
                A(f'v_perm_b32 v{t0 + 4*T + i}, v{b + 2*i + 1}, v{b + 2*i}, {sSelHi if T else sSelLo}')
        if gi < 32:
            for i in range(8): A(f'v_accvgpr_write_b32 a{8 * gi + i}, v{t0 + i}')
    for gi in range(DEP): issue(gi)
    for gi in range(NG):
        if gi + DEP < NG: issue(gi + DEP)
        process(gi)
    A(f'''
    v_lshlrev_b32 v4, 4, v1
    v_and_b32 v5, 3, v1
    v_min_u32 v5, 2, v5
    v_lshrrev_b32 v6, 2, v1
    v_lshlrev_b32 v6, 6, v6
    v_lshl_add_u32 v5, v5, 4, v6
    v_and_b32 v6, 3, v1
    v_cmp_le_u32 s[80:81], 2, v6
    s_mov_b32 {sA}, {FLAG_KV}
    s_mov_b32 {sB}, {FLAG_QF}
    w_p1poll:
    buffer_load_dwordx4 v[8:11], v4, {S_WS}, {sA} offen sc1
    buffer_load_dwordx4 v[16:19], v5, {S_WS}, {sB} offen sc1
    s_sub_u32 {sBud}, {sBud}, 1
    s_cbranch_scc1 k_end
    s_waitcnt vmcnt(0)
    v_cndmask_b32 v19, v19, v18, s[80:81]
    v_min3_u32 v8, v8, v9, v10
    v_min3_u32 v8, v8, v11, v16
    v_min3_u32 v8, v8, v17, v18
    v_min_u32 v8, v8, v19
    v_cmp_eq_u32 vcc, 0, v8
    s_cbranch_vccz w_p1ok
    s_sleep 8
    s_branch w_p1poll
    w_p1ok:
    ''')
    A(f'''
    v_and_b32 v5, 7, v2
    v_lshlrev_b32 v5, 4, v5
    v_lshl_add_u32 v4, v3, 7, v5           ; KM: g*128 + (n&7)*16
    v_lshrrev_b32 v5, 2, v2
    v_lshlrev_b32 v5, 10, v5
    v_lshl_add_u32 v5, v3, 8, v5
    v_and_b32 v6, 3, v2
    v_lshl_add_u32 v5, v6, 6, v5           ; VM
    v_lshlrev_b32 v6, 10, v2
    v_lshl_add_u32 v6, v3, 4, v6
    v_add_u32 v6, {sC0}, v6                ; x/out: n*1024 + g*16 + c0
    s_lshl_b32 {sT}, {sW_}, 11
    v_add_u32 v7, {sT}, v15
    v_and_b32 v8, 3, v1
    v_lshlrev_b32 v8, 2, v8
    v_and_b32 v9, 7, v1
    v_lshlrev_b32 v9, 2, v9
    s_lshl_b32 {sT}, {sW_}, 4
    v_lshlrev_b32 v10, 2, v3
    v_sub_u32 v10, v2, v10
    v_add_u32 v10, {sT}, v10               ; 16qt + n - 4g
    s_sub_u32 {sSeg}, {sQ}, 1
    s_mov_b32 {sI}, 1
    s_mov_b32 {sT3}, 0xffff0000
    ''')
    for i in range(8):
        A(f'v_cmp_le_i32 s[{80 + 2*i}:{81 + 2*i}], {16 * (i >> 2) + (i & 3)}, v10')
    ACA, ACB = 16, 24
    Qf, K0, Vf, KMf, VMf, S, Hf = 32, 48, 80, 112, 128, 144, 112
    OA = 48
    XR = 160
    A('p2_seg:')
    A.reset_track()
    A(f'''
    s_lshl_b32 {sT}, {sSeg}, 1
    s_add_u32 {sT2}, {sT}, {sRh}
    s_mul_i32 {sTile}, {sT2}, {TS}
    s_add_u32 {sTile}, {sTile}, {IMG + 64 * 4096}
    s_mul_i32 {sA}, {sW_}, {11 * 1024}
    s_add_u32 {sA}, {sA}, {sTile}
    s_add_u32 {sA}, {sA}, {32 * 4096}
    ''')
    for i in range(11):
        A(f'buffer_load_dwordx4 {vr(Hf + 4*i, 4)}, v15, {S_WS}, {sA} offen offset:{(i & 3) * 1024} sc1', tag=('h', i))
        if i & 3 == 3: A(f's_add_u32 {sA}, {sA}, 4096')
    A(f'''s_lshl_b32 {sB}, {sT2}, 14
    buffer_load_dwordx4 {vr(XR, 4)}, v6, {S_X}, {sB} offen
    s_cmp_lt_u32 {sW_}, 2
    s_cbranch_scc0 p2_noqkv
    s_mul_i32 {sA}, {sT}, {TS}
    s_lshl_b32 {sT2}, {sTT}, 12
    s_add_u32 {sA}, {sA}, {sT2}
    s_add_u32 {sA}, {sA}, {IMG}
    s_mul_i32 {sB}, {sW_}, {TS}
    s_add_u32 {sB}, {sB}, {sA}
    s_add_u32 {sB}, {sB}, {32 * 4096}
    ''')
    for kq in range(4):
        A(f'buffer_load_dwordx4 {vr(Qf + 4*kq, 4)}, v15, {S_WS}, {sB} offen offset:{kq * 1024} sc1')
    for tau in range(2):
        for kq in range(4):
            A(f'buffer_load_dwordx4 {vr(K0 + 16*tau + 4*kq, 4)}, v15, {S_WS}, {sA} offen offset:{kq * 1024} sc1')
        if tau == 0: A(f's_add_u32 {sA}, {sA}, {TS}')
    A(f'''s_lshl_b32 {sA}, {sSeg}, 18
    s_lshl_b32 {sT2}, {sTT}, 13
    s_add_u32 {sA}, {sA}, {sT2}
    s_add_u32 {sA}, {sA}, {VW}''')
    for T in range(8):
        A(f'buffer_load_dwordx4 {vr(Vf + 4*T, 4)}, v15, {S_WS}, {sA} offen offset:{(T & 3) * 1024} sc1')
        if T == 3: A(f's_add_u32 {sA}, {sA}, 4096')
    A('p2_noqkv:')
    A('s_waitcnt vmcnt(0)')
    for i in range(11):
        for T in range(2):
            d = vr(ACB + 4*T, 4)
            A(f'v_mfma_f32_16x16x32_bf16 {d}, {vr(WH + 8*i + 4*T, 4)}, {vr(Hf + 4*i, 4)}, {"0" if i == 0 else d}')
    A(f'ds_write_b128 v7, {vr(ACB,4)} offset:8192\nds_write_b128 v7, {vr(ACB+4,4)} offset:9216')
    A(f's_cmp_lt_u32 {sW_}, 2\ns_cbranch_scc0 p2_noatt')
    for kq in range(4):
        for tau in range(2):
            d = vr(S + 4*tau, 4)
            A(f'v_mfma_f32_16x16x32_bf16 {d}, {vr(K0 + 16*tau + 4*kq, 4)}, {vr(Qf + 4*kq, 4)}, {"0" if kq == 0 else d}')
    A(f'''
    s_lshl_b32 {sT}, {sTT}, 4
    p2_ppoll:
    buffer_load_dword v11, v8, {S_WS}, {sT} offen sc1
    s_sub_u32 {sBud}, {sBud}, 1
    s_cbranch_scc1 k_end
    s_waitcnt vmcnt(0)
    v_cmp_ge_u32 vcc, {sSeg}, v11
    s_cbranch_vccz p2_pok
    s_sleep 2
    s_branch p2_ppoll
    p2_pok:
    s_lshl_b32 {sT}, {sSeg}, 5
    s_add_u32 {sT}, {sT}, {sTT}
    s_mul_i32 {sA}, {sT}, {KM_SS}
    s_add_u32 {sA}, {sA}, {KM}
    s_lshl_b32 {sB}, {sT}, 12
    s_add_u32 {sB}, {sB}, {VM}
    ''')
    for kq in range(4):
        A(f'buffer_load_dwordx4 {vr(KMf + 4*kq, 4)}, v4, {S_WS}, {sA} offen offset:{kq * KM_WS} sc1', tag=('km', kq))
    for i in range(4):
        A(f'buffer_load_dwordx4 {vr(VMf + 4*i, 4)}, v5, {S_WS}, {sB} offen offset:{i * 16} sc1', tag='vm')
    for kq in range(4):
        A.wait_vm(('km', kq))
        d = vr(S + 8, 4)
        A(f'v_mfma_f32_16x16x32_bf16 {d}, {vr(KMf + 4*kq, 4)}, {vr(Qf + 4*kq, 4)}, {"0" if kq == 0 else d}')
    def rnd(lo, n):
        for i in range(lo, lo + n, 2):
            A(f'v_cvt_pk_bf16_f32 v{i+1}, v{i}, v{i+1}\nv_lshlrev_b32 v{i}, 16, v{i+1}\nv_and_b32 v{i+1}, {sT3}, v{i+1}')
    rnd(S, 12)
    for i in range(12): A(f'v_mul_f32 v{S+i}, 0x3db504f3, v{S+i}')
    rnd(S, 12)
    A('v_mov_b32 v12, 0xce6e6b28')
    for i in range(8): A(f'v_cndmask_b32 v{S+i}, v12, v{S+i}, s[{80+2*i}:{81+2*i}]')
    A(f'''
    v_max3_f32 v12, v{S}, v{S+1}, v{S+2}
    v_max3_f32 v13, v{S+3}, v{S+4}, v{S+5}
    v_max3_f32 v12, v12, v{S+6}, v{S+7}
    v_max3_f32 v13, v13, v{S+8}, v{S+9}
    v_max3_f32 v12, v12, v{S+10}, v{S+11}
    v_max_f32 v12, v12, v13
    v_mov_b32 v13, v12
    v_permlane32_swap_b32 v12, v13
    v_max_f32 v12, v12, v13
    v_mov_b32 v13, v12
    v_permlane16_swap_b32 v12, v13
    v_max_f32 v12, v12, v13
    ''')
    for i in range(12): A(f'v_sub_f32 v{S+i}, v{S+i}, v12')
    for i in range(12): A(f'v_mul_f32 v{S+i}, 0x3fb8aa3b, v{S+i}')
    for i in range(12): A(f'v_exp_f32 v{S+i}, v{S+i}')
    A(f'''
    v_add_f32 v12, v{S+8}, v{S+9}
    v_add_f32 v13, v{S+10}, v{S+11}
    v_add_f32 v12, v12, v13
    v_mul_f32 v12, 0.5, v12
    ''')
    for i in range(8): A(f'v_add_f32 v12, v12, v{S+i}')
    A(f'''
    v_mov_b32 v13, v12
    v_permlane32_swap_b32 v12, v13
    v_add_f32 v12, v12, v13
    v_mov_b32 v13, v12
    v_permlane16_swap_b32 v12, v13
    v_add_f32 v12, v12, v13
    v_rcp_f32 v12, v12
    ''')
    for i in range(12): A(f'v_mul_f32 v{S+i}, v12, v{S+i}')
    P = Qf
    for i in range(6): A(f'v_cvt_pk_bf16_f32 v{P+i}, v{S+2*i}, v{S+2*i+1}')
    for T in range(8):
        A(f'v_mfma_f32_16x16x32_bf16 {vr(OA + 4*T, 4)}, {vr(Vf + 4*T, 4)}, {vr(P, 4)}, 0')
    A.wait_vm('vm')
    for T in range(8):
        A(f'v_mfma_f32_16x16x16_bf16 {vr(OA + 4*T, 4)}, {vr(VMf + 2*T, 2)}, {vr(P + 4, 2)}, {vr(OA + 4*T, 4)}')
    A(f'''
    s_lshl_b32 {sT}, {sSeg}, 1
    s_add_u32 {sT}, {sT}, {sW_}
    s_mul_i32 {sA}, {sT}, {TS}
    s_lshl_b32 {sT2}, {sTT}, 12
    s_add_u32 {sA}, {sA}, {sT2}
    s_add_u32 {sA}, {sA}, {IMG + 64 * 4096}
    ''')
    for r in range(4):
        for i in range(4):
            A(f'v_cvt_pk_bf16_f32 v{Vf + 4*r + i}, v{OA + 8*i + r}, v{OA + 8*i + 4 + r}')
        A(f'buffer_store_dwordx4 {vr(Vf + 4*r, 4)}, v14, {S_WS}, {sA} offen offset:{r * 256} sc1')
    A(f'''
    p2_noatt:
    s_waitcnt vmcnt(0) lgkmcnt(0)
    s_barrier
    s_lshl_b32 {sT}, {sQ}, 7
    s_add_u32 {sT}, {sT}, {FLAG_O}
    s_cmp_lg_u32 {sW_}, 0
    s_cbranch_scc1 p2_nof
    s_lshl_b32 {sT2}, {sTT}, 2
    s_add_u32 {sT2}, {sT2}, {sT}
    v_mov_b32 v12, 0
    v_mov_b32 v13, {sI}
    buffer_store_dword v13, v12, {S_WS}, {sT2} offen sc1
    ''')
    for w in range(1, 4):
        for T in range(2):
            A(f'ds_read_b128 {vr(32 + 8*w + 4*T, 4)}, v15 offset:{8192 + w*2048 + T*1024}')
    A('s_waitcnt lgkmcnt(0)')
    for w in range(1, 4):
        for i in range(8): A(f'v_add_f32 v{ACB+i}, v{ACB+i}, v{32 + 8*w + i}')
    for r in range(4): A(f'v_cvt_pk_bf16_f32 v{XR+4+r}, v{ACB+r}, v{ACB+4+r}')
    A(f'''
    p2_nof:
    s_lshl_b32 {sT2}, {sW_}, 5
    s_add_u32 {sT}, {sT}, {sT2}
    p2_opoll:
    buffer_load_dword v11, v9, {S_WS}, {sT} offen sc1
    s_sub_u32 {sBud}, {sBud}, 1
    s_cbranch_scc1 k_end
    s_waitcnt vmcnt(0)
    v_cmp_gt_u32 vcc, {sI}, v11
    s_cbranch_vccz p2_ook
    s_sleep 1
    s_branch p2_opoll
    p2_ook:
    s_lshl_b32 {sA}, {sW_}, 15
    s_add_u32 {sA}, {sA}, {sTile}
    ''')
    A.reset_track()
    for i in range(32):
        A(f'buffer_load_dwordx4 {vr(32 + 4*i, 4)}, v15, {S_WS}, {sA} offen offset:{(i & 3) * 1024} sc1', tag=i)
        if i & 3 == 3: A(f's_add_u32 {sA}, {sA}, 4096')
    for i in range(32):
        A.wait_vm(i)
        for T in range(2):
            d = vr(ACA + 4*T, 4)
            A(f'v_mfma_f32_16x16x32_bf16 {d}, {vr(8*i + 4*T, 4, "a")}, {vr(32 + 4*i, 4)}, {"0" if i == 0 else d}')
    A(f'''ds_write_b128 v7, {vr(ACA,4)}
    ds_write_b128 v7, {vr(ACA+4,4)} offset:1024
    s_waitcnt lgkmcnt(0)
    s_barrier
    s_cmp_lg_u32 {sW_}, 0
    s_cbranch_scc1 p2_next''')
    for w in range(1, 4):
        for T in range(2):
            A(f'ds_read_b128 {vr(32 + 8*w + 4*T, 4)}, v15 offset:{w*2048 + T*1024}')
    A('s_waitcnt lgkmcnt(0)')
    for w in range(1, 4):
        for i in range(8): A(f'v_add_f32 v{ACA+i}, v{ACA+i}, v{32 + 8*w + i}')
    for r in range(4):
        A(f'''v_cvt_pk_bf16_f32 v32, v{ACA+r}, v{ACA+4+r}
        v_lshlrev_b32 v33, 16, v32
        v_and_b32 v34, {sT3}, v32
        v_lshlrev_b32 v35, 16, v{XR+r}
        v_and_b32 v36, {sT3}, v{XR+r}
        v_add_f32 v33, v33, v35
        v_add_f32 v34, v34, v36
        v_cvt_pk_bf16_f32 v32, v33, v34
        v_lshlrev_b32 v33, 16, v32
        v_and_b32 v34, {sT3}, v32
        v_lshlrev_b32 v35, 16, v{XR+4+r}
        v_and_b32 v36, {sT3}, v{XR+4+r}
        v_add_f32 v33, v33, v35
        v_add_f32 v34, v34, v36
        v_cvt_pk_bf16_f32 v{40+r}, v33, v34''')
    A(f'''
    s_lshl_b32 {sT}, {sSeg}, 1
    s_add_u32 {sT}, {sT}, {sRh}
    s_lshl_b32 {sT}, {sT}, 14
    buffer_store_dwordx4 v[40:43], v6, {S_OUT}, {sT} offen
    p2_next:
    s_add_u32 {sSeg}, {sSeg}, 7
    s_add_u32 {sI}, {sI}, 1
    s_cmp_lt_u32 {sSeg}, 64
    s_cbranch_scc1 p2_seg
    ''')
```

```python
import sys
sys.path.insert(0, 'gen')
from asmlib import Asm, vr
import chain2 as C

NAME = 'parallel_sum__memory_aug_recurrent_mem_tr__dense_activation_relu__prompt'
HEADER = open(f'cdna_kernels/{NAME}.s.ref').read().split('; Override launch')[0]

def prologue(A):
    A('''
    s_cmp_ge_u32 s2, 256
    s_cbranch_scc1 k_end
    s_load_dwordx16 s[8:23], s[0:1], 0
    s_load_dwordx8 s[24:31], s[0:1], 64
    s_load_dwordx2 s[32:33], s[0:1], 96
    s_getreg_b32 s5, hwreg(HW_REG_XCC_ID)
    s_and_b32 s5, s5, 7
    s_waitcnt lgkmcnt(0)
    ''')
    tab = [(36, 32, 268435456), (40, 12, 4194304), (44, 14, 4194304), (48, 16, 4194304), (52, 18, 4194304),
           (56, 8, 2097152), (60, 30, 256), (64, 28, 2097152), (68, 24, 1409024), (72, 26, 1409024), (76, 10, 8192)]
    for b, p, n in tab:
        A(f'''s_mov_b32 s{b}, s{p}
        s_and_b32 s{b+1}, s{p+1}, 0xffff
        s_mov_b32 s{b+2}, {n}
        s_mov_b32 s{b+3}, 0x00020000''')

def build(opt, path):
    A = Asm()
    prologue(A)
    A('s_and_b32 s3, s2, 7\ns_cmp_lg_u32 s3, 0\ns_cbranch_scc1 k_worker')
    C.chain_role(A, opt)
    A('k_worker:')
    if opt.get('workers', True):
        import worker as W
        W.worker_role(A, opt)
    A('k_end:\ns_endpgm')
    n = A.fix_hazards()
    txt = HEADER + '; @launch grid=(256,1,1) block=(256,1,1) lds=163840\n'
    txt += f'''.amdgcn_target "amdgcn-amd-amdhsa--gfx950"
.text
.globl {NAME}_kernel
.p2align 8
.type {NAME}_kernel,@function
{NAME}_kernel:
'''
    txt += A.text()
    txt += f'''.section .rodata,"a"
.p2align 6
.amdhsa_kernel {NAME}_kernel
  .amdhsa_next_free_vgpr 512
  .amdhsa_next_free_sgpr 102
  .amdhsa_accum_offset 256
  .amdhsa_group_segment_fixed_size 0
  .amdhsa_kernarg_size 104
  .amdhsa_user_sgpr_count 2
  .amdhsa_user_sgpr_kernarg_segment_ptr 1
  .amdhsa_system_sgpr_workgroup_id_x 1
.end_amdhsa_kernel
'''
    open(path, 'w').write(txt)
    print(path, 'nops inserted', n, 'lines', txt.count('\n'))

if __name__ == '__main__':
    import json
    path = sys.argv[1]
    opt = json.loads(sys.argv[2]) if len(sys.argv) > 2 else {}
    build(opt, path)
```

```python
from asmlib import Asm, vr
from chain import Stamps, DLIST, S_WS, S_WQ, S_WK, S_WV, S_WO, S_X, S_DBG, S_OUT, S_W1, S_W2, S_M0

FLAG_KV = 0x1000
FLAG_QF = 0x1400
FLAG_O = 0x1800
FLAG_PROG = 0x2000
MBUF = 0x4000
INBOX = 0x10000
STAMP = 0xA0000
REC = 0x1000000
VW = 0x4000000
OOB = 0x40000000
IMG = 0x5000000
TS = 107 * 4096

L_SH, L_VT, L_X, L_KT, L_FR = 0, 8192, 16384, 24576, 32768

sH, sW, sXCC, sT, sT2, sBud = 's3', 's4', 's5', 's6', 's7', 's8'
sStep, sTag, sMrd, sMwr, sMre, sInR, sInP1, sVseg, sKseg, sRec, sFlagA = [f's{i}' for i in range(9, 20)]
sWX = ['s20', 's21', 's22', 's23']
sSelLo, sSelHi, sM0V, sM0K, sKseg1, sFlagV = 's24', 's25', 's26', 's27', 's28', 's29'
sC = 's30'
sFl = 's31'

vL16, vInW, vMW, vQKw, vQKr, vVt, vIdx, vFr, vSh, vOw, vA, vB = [f'v{i}' for i in range(12)]
SEL, VMB, TMP, AF, BUF, ACC, VT = 12, 16, 20, 32, 64, 96, 120

WO_ORDER = [(0, 0, 0), (0, 1, 0), (1, 0, 0), (1, 1, 0)] + \
           [(0, T, pp) for pp in (1, 2, 3) for T in (0, 1)] + [(1, T, pp) for pp in (1, 2, 3) for T in (0, 1)]


def frag_map():
    m = {}
    own = [(0, 0), (1, 0), (0, 1), (1, 1)]
    for i, (T, kk) in enumerate(own):
        m[('q', T, kk)] = ('lds', i, [AF + 8, AF + 16, AF + 24, TMP][i])
        m[('k', T, kk)] = ('lds', 4 + i, BUF + 8 * i)
    dst = [BUF + 8, BUF + 16, BUF + 24, BUF, AF, AF + 8, AF + 16, AF + 24]
    for i in range(8):
        m[('o',) + WO_ORDER[8 + i]] = ('lds', 8 + i, dst[i])
    regs = [('v', 128 + 8 * i) for i in range(16)] + [('a', 8 * i) for i in range(32)]
    it = iter(regs)
    for kk in range(8):
        for mat in 'qkv':
            for T in (0, 1):
                if (mat, T, kk) not in m: m[(mat, T, kk)] = next(it)
    for i in range(8):
        m[('o',) + WO_ORDER[i]] = next(it)
    assert len(m) == 64
    return m


def kv_wait(A, nmt, lab):
    A(f'''
    s_lshr_b32 {sT}, {sH}, 1
    s_lshl_b32 {sT}, {sT}, 6
    s_add_u32 {sT}, {sT}, {FLAG_KV}
    v_lshrrev_b32 {vA}, 2, {vL16}
    v_min_u32 {vA}, {4 * (nmt - 1)}, {vA}
    {lab}:
    buffer_load_dword {vB}, {vA}, {S_WS}, {sT} offen sc1
    s_sub_u32 {sBud}, {sBud}, 1
    s_cbranch_scc1 k_end
    s_waitcnt vmcnt(0)
    v_cmp_eq_u32 vcc, 0, {vB}
    s_cbranch_vccnz {lab}
    ''')


def chain_role(A, opt):
    FM = frag_map()
    st = Stamps(A, opt.get('stamps'))
    A(f'''
    s_lshr_b32 {sH}, s2, 3
    v_lshrrev_b32 v20, 6, v0
    v_and_b32 v21, 63, v0           ; lane
    s_nop 0
    v_readfirstlane_b32 {sW}, v20
    v_and_b32 v22, 15, v21          ; c
    v_lshrrev_b32 v23, 4, v21       ; g
    v_lshlrev_b32 {vL16}, 4, v21
    s_mov_b32 {sBud}, 400000
    s_mov_b32 {sSelLo}, 0x05040100
    s_mov_b32 {sSelHi}, 0x07060302
    ''')
    st.init()
    for pp in range(4):
        A(f's_xor_b32 {sT}, {sW}, {pp}\ns_lshl_b32 {sWX[pp]}, {sT}, 19')
    A(f'''
    v_lshrrev_b32 v26, 1, v23
    v_lshlrev_b32 v26, 4, v26
    v_and_b32 v27, 1, v23
    v_lshlrev_b32 v27, 2, v27
    v_add_u32 v26, v26, v27
    s_lshl_b32 {sT}, {sW}, 6
    s_lshl_b32 {sT2}, {sH}, 8
    s_add_u32 {sT}, {sT}, {sT2}
    v_lshlrev_b32 v27, 2, v22
    v_lshlrev_b32 v24, 13, v26
    v_add3_u32 v24, v24, v27, {sT}
    s_lshl_b32 {sT}, {sW}, 7
    s_lshl_b32 {sT2}, {sH}, 17
    s_add_u32 {sT}, {sT}, {sT2}
    v_lshrrev_b32 v28, 2, v22        ; c>>2
    v_and_b32 v29, 3, v22            ; c&3
    v_lshlrev_b32 v26, 5, v28
    v_lshl_add_u32 v26, v29, 2, v26
    v_lshlrev_b32 v25, 12, v23
    v_add3_u32 v25, v25, v26, {sT}
    ; vSh
    s_lshl_b32 {sM0V}, {sW}, 11
    v_add_u32 {vSh}, {sM0V}, {vL16}
    s_lshl_b32 {sT}, {sW}, 15
    s_add_u32 {sT}, {sT}, {INBOX}
    v_lshlrev_b32 v26, 13, v28
    v_lshlrev_b32 v27, 11, v23
    v_add3_u32 {vInW}, v26, v27, {sT}
    v_lshrrev_b32 v26, 2, v21
    v_lshlrev_b32 v26, 1, v26
    v_add_u32 v26, {sH}, v26
    v_and_b32 v26, 31, v26
    v_lshlrev_b32 v26, 6, v26
    v_lshlrev_b32 v27, 4, v29
    v_add3_u32 {vInW}, {vInW}, v26, v27
    s_lshl_b32 {sInR}, {sH}, 13
    s_add_u32 {sInR}, {sInR}, {INBOX}
    s_mov_b32 {sInP1}, 0x20000
    s_bfe_u32 {sT}, {sH}, 0x20002
    s_lshl_b32 {sT}, {sT}, 11
    s_lshr_b32 {sT2}, {sH}, 4
    s_lshl_b32 {sT2}, {sT2}, 10
    s_add_u32 {sT}, {sT}, {sT2}
    s_and_b32 {sT2}, {sH}, 3
    s_lshl_b32 {sT2}, {sT2}, 8
    s_add_u32 {sT}, {sT}, {sT2}
    s_lshl_b32 {sT2}, {sW}, 6
    s_add_u32 {sT}, {sT}, {sT2}
    v_lshlrev_b32 v26, 4, v23
    v_lshlrev_b32 v27, 2, v22
    v_add3_u32 {vMW}, v26, v27, {sT}
    v_cmp_lt_u32 vcc, 3, v22
    v_mov_b32 v30, {OOB}
    v_cndmask_b32 {vMW}, {vMW}, v30, vcc
    s_and_b32 {sT}, {sW}, 1
    s_lshl_b32 {sT}, {sT}, 12
    s_lshl_b32 {sT2}, {sH}, 5
    s_add_u32 {sT}, {sT}, {sT2}
    s_lshr_b32 {sT2}, {sW}, 1
    s_lshl_b32 {sT2}, {sT2}, 4
    s_add_u32 {sT}, {sT}, {sT2}
    v_lshlrev_b32 v26, 10, v23
    v_add3_u32 v26, v26, v27, {sT}
    v_cndmask_b32 v26, v26, v30, vcc
    buffer_load_dword v31, v26, {S_M0}, 0 offen
    v_mov_b32 v16, -1
    v_mov_b32 v17, -1
    v_mov_b32 v18, -1
    v_mov_b32 v19, -1
    buffer_store_dwordx4 v[16:19], {vSh}, {S_WS}, {sInR} offen sc1
    buffer_store_dwordx4 v[16:19], {vSh}, {S_WS}, {sInR} offen offset:1024 sc1
    s_mov_b32 {sT}, {MBUF + 8192}
    buffer_store_dword v16, {vMW}, {S_WS}, {sT} offen sc1
    s_mov_b32 {sT}, {MBUF + 16384}
    buffer_store_dword v16, {vMW}, {S_WS}, {sT} offen sc1
    s_lshl_b32 {sT}, {sH}, 8
    s_lshl_b32 {sT2}, {sW}, 6
    s_add_u32 {sT}, {sT}, {sT2}
    v_lshlrev_b32 v26, 2, v21
    v_cmp_lt_u32 vcc, 15, v21
    v_cndmask_b32 v26, v26, v30, vcc
    v_mov_b32 v27, 0
    buffer_store_dword v27, v26, {S_WS}, {sT} offen sc1
    s_add_u32 {sT}, {sT}, {FLAG_PROG}
    buffer_store_dword v27, v26, {S_WS}, {sT} offen sc1
    s_mov_b32 {sT}, {MBUF}
    s_waitcnt vmcnt(6)
    buffer_store_dword v31, {vMW}, {S_WS}, {sT} offen sc1
    s_lshl_b32 {sFlagA}, {sH}, 8
    s_lshl_b32 {sT2}, {sW}, 2
    s_add_u32 {sFlagA}, {sFlagA}, {sT2}
    s_add_u32 {sFlagA}, {sFlagA}, {FLAG_PROG}
    s_add_u32 {sT}, {sM0V}, {L_X}
    v_lshlrev_b32 v26, 7, v28
    v_lshlrev_b32 v27, 2, v29
    v_add3_u32 {vQKw}, v26, v27, {sT}
    v_and_b32 v26, 1, v23
    v_lshlrev_b32 v26, 6, v26
    v_lshrrev_b32 v27, 1, v23
    v_lshlrev_b32 v27, 5, v27
    v_add3_u32 {vQKw}, {vQKw}, v26, v27
    v_lshlrev_b32 v26, 7, v23
    v_and_b32 v27, 7, v22
    v_lshl_add_u32 {vQKr}, v27, 4, v26
    v_add_u32 {vOw}, {sM0V}, {vQKr}
    ; vVt = (c&3)*2048 + g*256 + (4w + (c>>2))*16
    s_lshl_b32 {sT}, {sW}, 6
    v_lshlrev_b32 v26, 11, v29
    v_lshlrev_b32 v27, 8, v23
    v_add3_u32 {vVt}, v26, v27, {sT}
    v_lshl_add_u32 {vVt}, v28, 4, {vVt}
    ; vIdx
    v_and_b32 v26, 8, v21
    v_cmp_ne_u32 vcc, 0, v26
    v_mov_b32 v26, 0x44444444
    v_mov_b32 v27, 0xEEEEEEEE
    v_cndmask_b32 {vIdx}, v26, v27, vcc
    ; vFr
    s_lshl_b32 {sT}, {sW}, 15
    s_add_u32 {sT}, {sT}, {L_FR}
    v_add_u32 {vFr}, {sT}, {vL16}
    s_add_u32 {sM0K}, {sM0V}, {L_KT}
    s_add_u32 {sM0V}, {sM0V}, {L_VT}
    v_mov_b32 v26, 0x3f80
    v_mov_b32 v27, 0x3f800000
    v_cmp_eq_u32 vcc, 1, v29
    v_cndmask_b32 v26, v26, v27, vcc
    v_cmp_gt_u32 vcc, 2, v29
    v_cndmask_b32 v26, 0, v26, vcc
    v_mov_b32 v27, 0x3f803f80
    v_cmp_eq_u32 s[30:31], 2, v29
    ''')
    for r in range(4):
        A(f'''v_cmp_eq_u32 vcc, {r}, v28
        v_cndmask_b32 v{SEL+r}, 0, v26, vcc
        v_cndmask_b32 v{SEL+r}, v{SEL+r}, v27, s[30:31]''')
    A(f'''
    s_waitcnt vmcnt(0)
    s_barrier
    s_cmp_lg_u32 {sW}, 0
    s_cbranch_scc1 ch_noarr
    s_lshl_b32 {sT}, {sXCC}, 3
    s_mov_b64 s[30:31], 1
    s_lshl_b64 s[30:31], s[30:31], {sT}
    v_mov_b32 v26, s30
    v_mov_b32 v27, s31
    v_cmp_eq_u32 vcc, 0, v21
    v_cndmask_b32 v28, v30, 0, vcc
    buffer_atomic_add_x2 v[26:27], v28, {S_DBG}, 0 offen sc1
    ch_noarr:
    ''')
    A.reset_track()
    groups = [(mat, kk) for kk in range(8) for mat in 'qkv'] + [('o', P, pp) for pp in range(4) for P in range(2)]
    STG = 32
    srd = {'q': S_WQ, 'k': S_WK, 'v': S_WV}
    def issue(gi):
        g = groups[gi]
        b = STG + 16 * (gi % 4)
        if g[0] == 'o':
            A(f's_lshr_b32 {sT}, {sWX[g[2]]}, 4\ns_add_u32 {sT2}, {sT}, 16384')
            for j in range(8):
                off = 2048 * ((j >> 1) & 1) + 16 * (j & 1) + 512 * g[1]
                so = sT if j < 4 else sT2
                A(f'buffer_load_dword v{b+2*j}, v25, {S_WO}, {so} offen offset:{off}', tag=gi)
                A(f'buffer_load_dword v{b+2*j+1}, v25, {S_WO}, {so} offen offset:{off + 1024}', tag=gi)
        else:
            kk = g[1]
            for r in range(8):
                so = ((kk & 1) << 21) + DLIST[r] * 8192
                A(f's_add_u32 {sT}, {sWX[kk >> 1]}, {so}')
                A(f's_add_u32 {sT2}, {sWX[kk >> 1]}, {so + 8192}')
                A(f'buffer_load_dword v{b+2*r}, v24, {srd[g[0]]}, {sT} offen', tag=gi)
                A(f'buffer_load_dword v{b+2*r+1}, v24, {srd[g[0]]}, {sT2} offen', tag=gi)
    def process(gi):
        g = groups[gi]
        b = STG + 16 * (gi % 4)
        A.wait_vm(gi)
        for T in (0, 1):
            key = (g[0], T, g[1]) if g[0] != 'o' else ('o', g[1], T, g[2])
            kind, loc = FM[key][:2]
            sel = sSelLo if T == 0 else sSelHi
            t0 = 96 + 8 * T + 16 * (gi % 2)
            for r in range(8):
                dst = f'v{loc + r}' if kind == 'v' else f'v{t0 + r}'
                A(f'v_perm_b32 {dst}, v{b+2*r+1}, v{b+2*r}, {sel}')
            if kind == 'a':
                for r in range(8):
                    A(f'v_accvgpr_write_b32 a{loc + r}, v{t0 + r}')
            elif kind == 'lds':
                A(f'ds_write_b128 {vFr}, {vr(t0,4)} offset:{loc*2048}')
                A(f'ds_write_b128 {vFr}, {vr(t0+4,4)} offset:{loc*2048+1024}')
                A('s_waitcnt lgkmcnt(0)')
    n = len(groups)
    for gi in range(3): issue(gi)
    for gi in range(n):
        if gi + 3 < n: issue(gi + 3)
        process(gi)
    st.bmark(0)
    A(f'''
    v_mov_b32 v28, 0
    ch_initpoll:
    buffer_load_dwordx2 v[26:27], v28, {S_DBG}, 0 offen sc1
    s_sub_u32 {sBud}, {sBud}, 1
    s_cbranch_scc1 k_end
    s_waitcnt vmcnt(0)
    v_readfirstlane_b32 s30, v26
    v_readfirstlane_b32 s31, v27
    s_add_u32 {sT}, s30, s31
    s_lshr_b32 {sT2}, {sT}, 16
    s_add_u32 {sT}, {sT}, {sT2}
    s_lshr_b32 {sT2}, {sT}, 8
    s_add_u32 {sT}, {sT}, {sT2}
    s_and_b32 {sT}, {sT}, 0xff
    s_cmp_lg_u32 {sT}, 32
    s_cbranch_scc1 ch_initpoll
    s_lshl_b32 {sT}, {sXCC}, 3
    s_lshr_b64 s[30:31], s[30:31], {sT}
    s_and_b32 {sFlagV}, s30, 0xff
    ''')
    kv_wait(A, 14, 'ch_kv0')
    A(f'''
    s_mov_b32 {sC}, 0x3e0293ee
    s_mov_b32 {sStep}, 0
    s_mov_b32 {sTag}, 0
    s_mov_b32 {sMrd}, {MBUF}
    s_mov_b32 {sMwr}, {MBUF + 8192}
    s_mov_b32 {sMre}, {MBUF + 16384}
    s_lshl_b32 {sT}, {sH}, 13
    s_add_u32 {sVseg}, {sT}, {VW}
    s_add_u32 {sRec}, {sT}, {REC - 0x80000}
    s_lshl_b32 {sKseg}, {sH}, 12
    s_lshl_b32 {sT}, {sW}, 10
    s_add_u32 {sKseg}, {sKseg}, {sT}
    s_add_u32 {sKseg}, {sKseg}, {IMG}
    s_add_u32 {sKseg1}, {sKseg}, {TS - 1024}
    ''')
    for t in dma_v() + dma_k(): A(t)
    for r in range(ACC, ACC + 24, 2): A(f'v_mov_b64 {vr(r,2)}, 0')
    for t in preload(FM): A(t)
    A(f'''s_waitcnt vmcnt(0)
    buffer_load_dwordx4 {vr(AF,4)}, {vSh}, {S_WS}, {sMrd} offen sc1
    buffer_load_dwordx4 {vr(AF+4,4)}, {vSh}, {S_WS}, {sMrd} offen offset:1024 sc1
    s_cmp_eq_u32 {sFlagV}, 32
    s_cbranch_scc0 ch_slow''')
    st.bmark(1)
    st.prep()
    if opt.get('force_slow'): A('s_branch ch_slow')
    chain_loop(A, FM, '', 'f', st, opt)
    A('ch_slow:')
    chain_loop(A, FM, 'sc1', 's', Stamps(A, False), opt)
    A('ch_fin:')
    if st.on:
        A(f'''s_lshl_b32 {sT}, {sH}, 2
        s_add_u32 {sT}, {sT}, {sW}
        s_lshl_b32 {sT}, {sT}, 6
        s_add_u32 {sT}, {sT}, {STAMP}
        v_mov_b32 v20, 0
        ''')
        for i in range(16):
            A(f'v_mov_b32 v21, s{84+i}\nbuffer_store_dword v21, v20, {S_WS}, {sT} offen offset:{4*i}')
    A('s_branch k_end')


def dma_v():
    return [f's_mov_b32 m0, {sM0V}',
            f'buffer_load_dwordx4 {vVt}, {S_WS}, {sVseg} offen sc1 lds',
            f'buffer_load_dwordx4 {vVt}, {S_WS}, {sVseg} offen offset:1024 sc1 lds']

def dma_k():
    return [f's_mov_b32 m0, {sM0K}',
            f'buffer_load_dwordx4 {vL16}, {S_WS}, {sKseg} offen sc1 lds',
            f'buffer_load_dwordx4 {vL16}, {S_WS}, {sKseg1} offen offset:1024 sc1 lds']

def fr_read(FM, key):
    _, slot, b = FM[key]
    return [f'ds_read_b128 {vr(b,4)}, {vFr} offset:{slot*2048}',
            f'ds_read_b128 {vr(b+4,4)}, {vFr} offset:{slot*2048+1024}']

def preload(FM):
    o = []
    for mat in 'qk':
        for kk in (0, 1):
            for T in (0, 1): o += fr_read(FM, (mat, T, kk))
    return o


def chain_loop(A, FM, sc, sfx, st, opt):
    def B(key):
        e = FM[key]
        if e[0] == 'lds': return vr(e[2], 8)
        return vr(e[1], 8, e[0])
    def sm(d, a, key):
        A(f'v_smfmac_f32_16x16x64_bf16 {vr(d,4)}, {vr(a,4)}, {B(key)}, {vIdx}')
    accb = {'q': ACC, 'k': ACC + 8, 'v': ACC + 16}
    def m(mat, kk, T, *fill):
        sm(accb[mat] + 4 * T, AF + 4 * kk, (mat, T, kk))
        F(*fill)
    def F(*fill):
        for f in fill:
            if isinstance(f, tuple):
                if f[0] == 'lg': A.wait_lg(f[1])
                elif f[0] == 'vm': A.wait_vm(f[1])
                else: A(f[1], tag=f[0])
            elif isinstance(f, list): F(*f)
            else: A(f)
    gl = [f'buffer_load_dwordx4 {vr(AF,4)}, {vSh}, {S_WS}, {{}} offen sc1',
          f'buffer_load_dwordx4 {vr(AF+4,4)}, {vSh}, {S_WS}, {{}} offen offset:1024 sc1']
    L = lambda n: f'{n}_{sfx}'
    KMT = TMP + 8
    dpos = opt.get('dma', 'a')
    A.reset_track()
    A(f'{L("ch_step")}:')
    A(f'''
    ds_read_b128 {vr(VT,4)}, {vSh} offset:{L_VT}
    ds_read_b128 {vr(VT+4,4)}, {vSh} offset:{L_VT+1024}
    ds_read_b128 {vr(KMT,4)}, {vOw} offset:{L_X+512}
    s_add_u32 {sVseg}, {sVseg}, 0x40000
    s_add_u32 {sKseg}, {sKseg}, {2 * TS}
    s_add_u32 {sKseg1}, {sKseg1}, {2 * TS}
    s_add_u32 {sRec}, {sRec}, 0x40000
    s_sub_u32 {sFl}, {sStep}, 1
    s_max_i32 {sFl}, {sFl}, 0
    s_cmp_eq_u32 {sStep}, 55
    s_cbranch_scc1 {L("ch_kv1")}
    {L("ch_kvb")}:
    s_waitcnt lgkmcnt(0)
    {L("ch_gw")}:
    s_waitcnt vmcnt(0)
    ''')
    A(f'ds_write_b128 {vSh}, {vr(AF,4)} offset:{L_SH}\nds_write_b128 {vSh}, {vr(AF+4,4)} offset:{L_SH+1024}')
    b = AF
    m('q', 0, 0, f'v_max3_u32 {vA}, v{b}, v{b+1}, v{b+2}', f'v_max3_u32 {vB}, v{b+3}, v{b+4}, v{b+5}',
      f'v_max3_u32 {vA}, {vA}, v{b+6}, v{b+7}')
    m('q', 0, 1, f'v_max_u32 {vA}, {vA}, {vB}', f'v_cmp_eq_u32 vcc, -1, {vA}', f's_cbranch_vccnz {L("ch_gre")}')
    st.mark(0)
    m('q', 1, 0, f'v_xor_b32 {vA}, 0x800, {vSh}', f'v_xor_b32 {vB}, 0x1000, {vSh}')
    m('q', 1, 1, 's_waitcnt lgkmcnt(0)', 's_barrier')
    st.mark(1)
    def sh(kk, ad): return (('af', kk), f'ds_read_b128 {vr(AF+4*kk,4)}, {ad} offset:{L_SH + (kk & 1) * 1024}')
    def kt(i): return ('kt', f'ds_read_b128 {vr(BUF+4*i,4)}, {vL16} offset:{L_KT + i * 1024}')
    F(sh(2, vA), sh(3, vA))
    m('k', 0, 0, sh(4, vB), sh(5, vB), f'v_xor_b32 {vA}, 0x1800, {vSh}')
    m('k', 0, 1, sh(6, vA), sh(7, vA))
    m('k', 1, 0, kt(0), kt(1), kt(2))
    m('k', 1, 1, kt(3), kt(4), kt(5))
    m('v', 0, 0, kt(6), kt(7), f'buffer_store_dwordx4 {vr(KMT,4)}, {vOw}, {S_WS}, {sRec} offen sc1')
    m('v', 0, 1, f'buffer_store_dwordx4 {vr(VMB,4)}, {vSh}, {S_WS}, {sRec} offen offset:1024 sc1', f'v_mov_b32 {vA}, -1')
    m('v', 1, 0, f'buffer_store_dword {vA}, {vMW}, {S_WS}, {sMre} offen {sc}', f'v_mov_b32 {vB}, {sFl}')
    m('v', 1, 1, f'buffer_store_dword {vB}, off, {S_WS}, {sFlagA} sc1')
    if dpos == 'a': F(dma_v())
    st.mark(2)
    for kk in range(2, 8):
        A.wait_lg(('af', kk))
        m('q', kk, 0); m('q', kk, 1)
    st.mark(3)
    def hs(d):
        return [f'v_permlane32_swap_b32 v{d}, v{d+2}', f'v_permlane32_swap_b32 v{d+1}, v{d+3}',
                f'v_permlane32_swap_b32 v{d+4}, v{d+6}', f'v_permlane32_swap_b32 v{d+5}, v{d+7}',
                f'v_add_f32 v{d}, v{d}, v{d+2}', f'v_add_f32 v{d+4}, v{d+4}, v{d+6}',
                f'v_add_f32 v{d+1}, v{d+1}, v{d+3}', f'v_add_f32 v{d+5}, v{d+5}, v{d+7}',
                f'v_cvt_pk_bf16_f32 {vA}, v{d}, v{d+4}', f'v_cvt_pk_bf16_f32 {vB}, v{d+1}, v{d+5}']
    QF = [AF, AF + 4, ACC, ACC + 4]
    KF = [ACC + 8, ACC + 12, BUF, BUF + 4]
    def qr(kq): return (('q', kq), f'ds_read_b128 {vr(QF[kq],4)}, {vQKr} offset:{L_X + kq * 2048}')
    def kr(kq): return (('km', kq), f'ds_read_b128 {vr(KF[kq],4)}, {vQKr} offset:{L_X + kq * 2048 + 512}')
    h = hs(ACC)
    m('k', 2, 0, 's_nop 2')
    m('k', 2, 1, 's_nop 2')
    m('k', 3, 0, h[0:3])
    m('k', 3, 1, h[3:6])
    m('k', 4, 0, h[6:9])
    m('k', 4, 1, h[9], f'ds_write2_b32 {vQKw}, {vA}, {vB} offset0:0 offset1:4')
    m('k', 5, 0)
    m('k', 5, 1)
    m('k', 6, 0, 's_waitcnt lgkmcnt(0)', 's_barrier')
    m('k', 6, 1, qr(0), qr(1), qr(2))
    m('k', 7, 0, qr(3))
    m('k', 7, 1)
    st.mark(4)
    dk = dma_k()
    if dpos == 'a':
        m('v', 2, 0, dk[0], dk[1], 's_nop 0')
        m('v', 2, 1, dk[2], 's_nop 1')
    else:
        m('v', 2, 0, 's_nop 2')
        m('v', 2, 1, 's_nop 2')
    S0, S1, SM_ = TMP, TMP + 4, TMP + 8
    def stok(kq, tau, *fill):
        d = vr(S0 + 4 * tau, 4)
        if tau == 0: A.wait_lg(('q', kq))
        A(f'v_mfma_f32_16x16x32_bf16 {d}, {vr(BUF + 4 * (2 * kq + tau), 4)}, {vr(QF[kq], 4)}, {"0" if kq == 0 else d}')
        F(*fill)
    h = hs(ACC + 8)
    stok(0, 0, h[0:3])
    stok(0, 1, h[3:6])
    stok(1, 0, h[6:9])
    stok(1, 1, h[9], f'ds_write2_b32 {vQKw}, {vA}, {vB} offset0:128 offset1:132')
    stok(2, 0, f's_cmp_eq_u32 {sStep}, 63', f's_cbranch_scc1 {L("ch_last")}')
    stok(2, 1)
    stok(3, 0)
    stok(3, 1, 's_waitcnt lgkmcnt(0)', 's_barrier')
    st.mark(5)
    F(kr(0), kr(1), kr(2), kr(3))
    wf = lambda i: [(('w', i), t) for t in fr_read(FM, ('o',) + WO_ORDER[i])]
    m('v', 3, 0, wf(8), wf(9)[0])
    m('v', 3, 1, wf(9)[1], wf(10))
    m('v', 4, 0, f'v_max3_f32 {vA}, v{S0}, v{S0+1}, v{S0+2}', f'v_max3_f32 {vB}, v{S0+3}, v{S1}, v{S1+1}')
    for kq in range(4):
        A.wait_lg(('km', kq))
        d = vr(SM_, 4)
        A(f'v_mfma_f32_16x16x32_bf16 {d}, {vr(KF[kq], 4)}, {vr(QF[kq], 4)}, {"0" if kq == 0 else d}')
        if kq == 0: F(f'v_max3_f32 {vA}, {vA}, v{S1+2}, v{S1+3}', f'v_max_f32 {vA}, {vA}, {vB}', f'v_mov_b32 {vB}, {vA}')
        if kq == 1: F('s_nop 0', f'v_permlane32_swap_b32 {vA}, {vB}', f'v_max_f32 {vA}, {vA}, {vB}')
    st.mark(6)
    P, HALF, O0 = ACC, ACC + 6, ACC + 8
    m('v', 4, 1, f'v_mov_b32 v{HALF}, 0x3f003f00', f'v_mov_b32 v{HALF+1}, 0x3f003f00', 's_nop 0')
    m('v', 5, 0, wf(11), 's_nop 0')
    m('v', 5, 1, f'v_max3_f32 {vA}, {vA}, v{SM_}, v{SM_+1}', f'v_max3_f32 {vA}, {vA}, v{SM_+2}, v{SM_+3}', f'v_mov_b32 {vB}, {vA}')
    m('v', 6, 0, 's_nop 0', f'v_permlane16_swap_b32 {vA}, {vB}', f'v_max_f32 {vA}, {vA}, {vB}')
    fma = lambda i: f'v_fma_f32 v{TMP+i}, v{TMP+i}, {sC}, -{vA}'
    ex = lambda i: f'v_exp_f32 v{TMP+i}, v{TMP+i}'
    cv = lambda i: f'v_cvt_pk_bf16_f32 v{P+i}, v{TMP+2*i}, v{TMP+2*i+1}'
    m('v', 6, 1, f'v_mul_f32 {vA}, {sC}, {vA}', fma(0), fma(1))
    m('v', 7, 0, fma(2), fma(3), ex(0))
    m('v', 7, 1, ex(1), fma(4), fma(5), ex(2), fma(6), ex(3), fma(7), ex(4), cv(0), ex(5), cv(1), ex(6), fma(8), ex(7), fma(9),
      cv(2), fma(10), cv(3), fma(11), ex(8))
    vm = lambda i: f'v_cvt_pk_bf16_f32 v{VMB+i}, v{ACC+16+2*i}, v{ACC+17+2*i}'
    A(f'v_mfma_f32_16x16x32_bf16 {vr(TMP,4)}, {vr(SEL,4)}, {vr(P,4)}, 0')
    F(ex(9), ex(10))
    A(f'v_mfma_f32_16x16x32_bf16 {vr(O0,4)}, {vr(VT,4)}, {vr(P,4)}, 0')
    F(ex(11), cv(4), vm(0))
    A(f'v_mfma_f32_16x16x32_bf16 {vr(O0+4,4)}, {vr(VT+4,4)}, {vr(P,4)}, 0')
    F(cv(5), vm(1), vm(2))
    A(f'v_mfma_f32_16x16x16_bf16 {vr(TMP,4)}, {vr(HALF,2)}, {vr(P+4,2)}, {vr(TMP,4)}')
    z = lambda r: f'v_mov_b64 {vr(r,2)}, 0'
    F(vm(3), z(TMP + 4), z(TMP + 6))
    A(f'v_mfma_f32_16x16x16_bf16 {vr(O0,4)}, {vr(VMB,2)}, {vr(P+4,2)}, {vr(O0,4)}')
    F(z(TMP + 8), z(TMP + 10), z(ACC))
    A(f'v_mfma_f32_16x16x16_bf16 {vr(O0+4,4)}, {vr(VMB+2,2)}, {vr(P+4,2)}, {vr(O0+4,4)}')
    st.mark(7)
    F(z(ACC + 2), f'v_rcp_f32 {vA}, v{TMP+2}', wf(12), z(TMP), z(TMP + 2))
    OF = [ACC + 16, ACC + 20, VT, VT + 4]
    for i in range(0, 8, 2):
        A(f'v_pk_mul_f32 {vr(O0+i,2)}, {vr(O0+i,2)}, v[10:11] op_sel_hi:[1,0]')
    for i in range(4):
        A(f'v_cvt_pk_bf16_f32 v{OF[0]+i}, v{O0+i}, v{O0+4+i}')
    A(f'ds_write_b128 {vOw}, {vr(OF[0],4)} offset:{L_X+1024}', tag='ow')
    WA = {(0, 0): TMP, (0, 1): TMP + 4, (1, 0): TMP + 8, (1, 1): ACC}
    def w(i, *fill):
        Pn, T, pp = WO_ORDER[i]
        if T == 0 and Pn == 0 and pp: A.wait_lg(('o', pp))
        if i >= 8: A.wait_lg(('w', i))
        sm(WA[(Pn, T)], OF[pp], ('o', Pn, T, pp))
        F(*fill)
    def orr(pp, ad): return (('o', pp), f'ds_read_b128 {vr(OF[pp],4)}, {ad} offset:{L_X + 1024}')
    def pack(Pn):
        d0, d1 = WA[(Pn, 0)], WA[(Pn, 1)]
        return [f'v_cvt_pk_bf16_f32 v{d0+j}, v{d0+j}, v{d1+j}' for j in range(4)], \
               [f'v_and_or_b32 v{d0}, v{d0}, -2, {sTag}',
                f'buffer_store_dwordx4 {vr(d0,4)}, {vInW}, {S_WS}, {sInP1 if Pn else 0} offen {sc}']
    w(0, f'v_xor_b32 {vA}, 0x800, {vOw}', f'v_xor_b32 {vB}, 0x1000, {vOw}')
    w(1)
    w(2, 's_waitcnt lgkmcnt(0)', 's_barrier')
    st.mark(8)
    F(orr(1, vA), orr(2, vB), f'v_xor_b32 {vA}, 0x1800, {vOw}')
    w(3, orr(3, vA), wf(13), wf(14), wf(15))
    if dpos == 'b': F(dma_v(), dma_k())
    w(4, z(ACC + 4), z(ACC + 6))
    w(5, z(ACC + 8), z(ACC + 10))
    w(6, z(ACC + 12), z(ACC + 14))
    w(7); w(8); w(9)
    c0, s0 = pack(0)
    w(10, 's_nop 2')
    w(11, 's_nop 2')
    w(12, c0[0:3])
    w(13, c0[3], s0)
    w(14)
    pre = preload(FM)
    w(15, z(ACC + 16), z(ACC + 18), z(ACC + 20), z(ACC + 22), pre[8:12])
    c1, s1 = pack(1)
    F(c1, s1)
    st.mark(9)
    F([g.format(sInR) for g in gl])
    F(z(ACC), z(ACC + 2), pre[0:8], pre[12:16])
    A(f'{L("ch_rw")}:')
    RD = TMP + 8
    A(f'''
    s_waitcnt vmcnt(0)
    v_mfma_f32_16x16x32_bf16 {vr(RD,4)}, {vr(SEL,4)}, {vr(AF,4)}, 0
    v_xor_b32 {vA}, {sTag}, v{AF}
    v_xor_b32 {vB}, {sTag}, v{AF+4}
    v_mfma_f32_16x16x32_bf16 {vr(RD,4)}, {vr(SEL,4)}, {vr(AF+4,4)}, {vr(RD,4)}
    v_or_b32 {vA}, {vA}, {vB}
    v_and_b32 {vA}, 1, {vA}
    v_cmp_ne_u32 vcc, 0, {vA}
    s_cbranch_vccnz {L("ch_r0")}
    s_add_u32 {sStep}, {sStep}, 1
    s_xor_b32 {sTag}, {sTag}, 1
    s_mov_b32 {sT}, {sMre}
    s_mov_b32 {sMre}, {sMrd}
    s_mov_b32 {sMrd}, {sMwr}
    v_add_f32_dpp v{RD}, v{RD}, v{RD} row_ror:4 row_mask:0xf bank_mask:0xf
    v_add_f32_dpp v{RD+1}, v{RD+1}, v{RD+1} row_ror:4 row_mask:0xf bank_mask:0xf
    s_mov_b32 {sMwr}, {sT}
    v_add_f32_dpp v{RD}, v{RD}, v{RD} row_ror:8 row_mask:0xf bank_mask:0xf
    v_add_f32_dpp v{RD+1}, v{RD+1}, v{RD+1} row_ror:8 row_mask:0xf bank_mask:0xf
    v_cvt_pk_bf16_f32 {vA}, v{RD}, v{RD+1}
    buffer_store_dword {vA}, {vMW}, {S_WS}, {sMrd} offen {sc}
    ''')
    F([g.format(sMrd) for g in gl])
    st.mark(10)
    st.flush(11)
    A(f's_branch {L("ch_step")}')
    A(f'{L("ch_r0")}:')
    if st.on: A('s_add_u32 s99, s99, 1')
    F([g.format(sInR) for g in gl])
    A(f's_sub_u32 {sBud}, {sBud}, 1\ns_cbranch_scc1 k_end\ns_branch {L("ch_rw")}')
    A(f'{L("ch_gre")}:')
    if st.on: A('s_add_u32 s98, s98, 1')
    F([g.format(sMrd) for g in gl])
    A(f's_sub_u32 {sBud}, {sBud}, 1\ns_cbranch_scc1 k_end')
    F(z(ACC), z(ACC + 2), z(ACC + 4), z(ACC + 6))
    A(f's_branch {L("ch_gw")}')
    A(f'{L("ch_kv1")}:')
    kv_wait(A, 16, L('ch_kv1p'))
    A(f's_branch {L("ch_kvb")}')
    A(f'{L("ch_last")}:')
    A.reset_track()
    for kk in range(3, 8):
        m('v', kk, 0); m('v', kk, 1)
    A(f'''s_add_u32 {sRec}, {sRec}, 0x40000
    s_waitcnt lgkmcnt(0)
    ds_read_b128 {vr(KMT,4)}, {vOw} offset:{L_X+512}
    s_waitcnt lgkmcnt(0)
    buffer_store_dwordx4 {vr(KMT,4)}, {vOw}, {S_WS}, {sRec} offen sc1''')
    F(vm(0), vm(1), vm(2), vm(3))
    A(f'''buffer_store_dwordx4 {vr(VMB,4)}, {vSh}, {S_WS}, {sRec} offen offset:1024 sc1
    v_mov_b32 {vB}, 64
    s_waitcnt vmcnt(0)
    buffer_store_dword {vB}, off, {S_WS}, {sFlagA} sc1
    s_branch ch_fin
    ''')
```

```python
from asmlib import Asm, vr
from chain2 import *

sQ, sW_, sT, sT2, sBud = 's3', 's4', 's6', 's7', 's8'
sTT, sIdx, sMt, sG, sRnd, sIsV, sRelu, sOut, sStr, sKo, sKs, sCnt, sFlg = [f's{i}' for i in range(9, 22)]
sSelLo, sSelHi = 's22', 's23'
S_W = 's[24:27]'
sNeedLN, sT3, sT4 = 's28', 's29', 's30'

XF = 16
F = [32, 128]
R = [96, 64]
LN = 128


def worker_role(A, opt):
    A(f'''
    s_lshr_b32 {sTT}, s2, 3
    s_sub_u32 {sIdx}, {sQ}, 1
    s_lshl_b32 {sIdx}, {sIdx}, 5
    s_add_u32 {sIdx}, {sIdx}, {sTT}
    v_lshrrev_b32 v4, 6, v0
    v_and_b32 v1, 63, v0
    s_nop 0
    v_readfirstlane_b32 {sW_}, v4
    v_and_b32 v2, 15, v1
    v_lshrrev_b32 v3, 4, v1
    v_lshlrev_b32 v15, 4, v1
    s_mov_b32 {sBud}, 200000
    s_mov_b32 {sSelLo}, 0x05040100
    s_mov_b32 {sSelHi}, 0x07060302
    ; g = idx / 14, mt = idx % 14
    s_mul_i32 {sG}, {sIdx}, 4682
    s_lshr_b32 {sG}, {sG}, 16
    s_mul_i32 {sT}, {sG}, 14
    s_sub_u32 {sMt}, {sIdx}, {sT}
    s_mov_b32 {sRnd}, 0
    s_mov_b32 {sNeedLN}, 1
    v_lshlrev_b32 v4, 1, v3
    v_xor_b32 v4, v4, v2
    v_lshlrev_b32 v5, 8, v3
    v_lshl_add_u32 v12, v4, 4, v5
    v_xor_b32 v13, 0x80, v12
    v_add_u32 v13, 8192, v13
    v_lshlrev_b32 v14, 10, v3
    v_lshl_add_u32 v14, v2, 4, v14
    ''')
    phase1(A, opt)
    phase2(A, opt)


def phase1(A, opt):
    A('w_task:')
    A(f'''
    s_mov_b32 {sIsV}, 0
    s_mov_b32 {sRelu}, 0x80008000
    s_mov_b32 {sStr}, 8192
    s_mov_b32 s26, 4194304
    s_mov_b32 s27, 0x00020000
    s_mul_i32 {sOut}, {sMt}, {8 * TS}
    s_add_u32 {sOut}, {sOut}, {IMG}
    s_cmp_lt_u32 {sG}, 16
    s_cbranch_scc0 w_tq
    ; KV
    s_lshl_b32 {sT}, {sG}, 1
    s_lshr_b32 {sT2}, {sW_}, 1
    s_add_u32 {sT}, {sT}, {sT2}        ; head
    s_lshl_b32 {sKo}, {sT}, 8
    s_lshl_b32 {sFlg}, {sG}, 6
    s_lshl_b32 {sT2}, {sMt}, 2
    s_add_u32 {sFlg}, {sFlg}, {sT2}
    s_add_u32 {sFlg}, {sFlg}, {FLAG_KV}
    s_and_b32 {sIsV}, {sW_}, 1
    s_cbranch_scc1 w_tv
    s_mov_b32 s24, s44
    s_mov_b32 s25, s45
    s_lshl_b32 {sT}, {sT}, 12
    s_add_u32 {sOut}, {sOut}, {sT}
    s_branch w_tdone
    w_tv:
    s_mov_b32 s24, s48
    s_mov_b32 s25, s49
    s_lshl_b32 {sT}, {sT}, 13
    s_lshl_b32 {sOut}, {sMt}, 20
    s_add_u32 {sOut}, {sOut}, {sT}
    s_add_u32 {sOut}, {sOut}, {VW}
    s_branch w_tdone
    w_tq:
    s_sub_u32 {sT}, {sG}, 16
    s_lshl_b32 {sFlg}, {sMt}, 6
    s_lshl_b32 {sT2}, {sT}, 2
    s_add_u32 {sFlg}, {sFlg}, {sT2}
    s_add_u32 {sFlg}, {sFlg}, {FLAG_QF}
    s_add_u32 {sT}, {sT2}, {sW_}
    s_cmp_lt_u32 {sT}, 32
    s_cbranch_scc0 w_tf
    s_mov_b32 s24, s40
    s_mov_b32 s25, s41
    s_lshl_b32 {sKo}, {sT}, 8
    s_add_u32 {sT}, {sT}, 32
    s_lshl_b32 {sT}, {sT}, 12
    s_add_u32 {sOut}, {sOut}, {sT}
    s_branch w_tdone
    w_tf:
    s_mov_b32 s24, s68
    s_mov_b32 s25, s69
    s_mov_b32 s26, 1409024
    s_mov_b32 {sStr}, 2752
    s_mov_b32 {sRelu}, 0
    s_sub_u32 {sT2}, {sT}, 32
    s_lshl_b32 {sKo}, {sT2}, 8
    s_add_u32 {sT2}, {sT}, 64
    s_lshl_b32 {sT2}, {sT2}, 12
    s_add_u32 {sOut}, {sOut}, {sT2}
    s_cmp_eq_u32 {sT}, 43
    s_cselect_b32 {sIsV}, 2, 0
    w_tdone:
    s_lshl_b32 {sKs}, {sStr}, 5
    s_lshl_b32 {sT}, {sStr}, 3
    v_mul_lo_u32 v4, v3, {sT}
    v_lshl_add_u32 v4, v2, 4, v4
    ''')
    for j in range(1, 8):
        A(f'v_add_u32 v{4+j}, {sStr}, v{3+j}')
    A.reset_track()
    A(f's_cmp_eq_u32 {sNeedLN}, 0\ns_cbranch_scc1 w_nox')
    A(f'''
    v_lshrrev_b32 v16, 3, v1
    v_and_b32 v17, 7, v1
    v_lshlrev_b32 v18, 10, v16
    v_lshl_add_u32 v18, v17, 4, v18
    s_lshl_b32 {sT}, {sMt}, 17
    s_lshl_b32 {sT2}, {sW_}, 15
    s_add_u32 {sT}, {sT}, {sT2}
    ''')
    for rg in range(4):
        for i in range(8):
            A(f'buffer_load_dwordx4 {vr(LN + 32*rg + 4*i, 4)}, v18, {S_X}, {sT} offen offset:{128*i}')
        if rg < 3: A(f's_add_u32 {sT}, {sT}, 8192')
    A('w_nox:')
    def wload(buf):
        return [f'buffer_load_dwordx4 {vr(R[buf] + 4*j, 4)}, v{4+j}, {S_W}, {sKo} offen' for j in range(8)] + \
               [f's_add_u32 {sKo}, {sKo}, {sKs}']
    for t in wload(0) + wload(1): A(t)
    A(f's_cmp_eq_u32 {sNeedLN}, 0\ns_cbranch_scc1 w_noln')
    A(f'''
    v_lshlrev_b32 v19, 1, v17
    v_xor_b32 v19, v19, v16
    v_lshlrev_b32 v19, 4, v19
    v_and_b32 v20, 3, v17
    v_lshl_add_u32 v19, v20, 8, v19
    v_lshrrev_b32 v20, 2, v17
    v_lshl_add_u32 v19, v20, 13, v19
    s_lshl_b32 {sT}, {sW_}, 11
    v_add_u32 v19, {sT}, v19
    v_xor_b32 v20, 0x80, v19
    v_add_u32 v21, 0x10000, v19
    v_add_u32 v22, 0x10000, v20
    v_mov_b32 v23, 0x3f803f80
    s_mov_b32 {sT3}, 0xffff0000
    s_barrier
    ''')
    def red8(v, t):
        for d in ('quad_perm:[1,0,3,2]', 'quad_perm:[2,3,0,1]', 'row_half_mirror'):
            A(f'v_add_f32_dpp v{v}, v{v}, v{v} {d} row_mask:0xf bank_mask:0xf')
    for rg in range(4):
        b = LN + 32 * rg
        A(f's_waitcnt vmcnt({16 + 8 * (3 - rg)})')
        for i in range(32):
            acc = 24 + (i & 1)
            A(f'v_dot2_f32_bf16 v{acc}, v{b+i}, v23, ' + ('0' if i < 2 else f'v{acc}'))
        A('v_add_f32 v24, v24, v25')
        red8(24, 25)
        A(f'''
        v_mul_f32 v24, 0x3b000000, v24       ; mean
        v_cvt_pk_bf16_f32 v26, v24, v24
        v_and_b32 v26, {sT3}, v26            ; m_b
        v_sub_f32 v25, v24, v26              ; mean - m_b
        ''')
        for i in range(32):
            t = 32 + 2 * (i & 7)
            acc = 28 + 2 * (i & 1)
            A(f'''v_lshlrev_b32 v{t}, 16, v{b+i}
            v_and_b32 v{t+1}, {sT3}, v{b+i}
            v_pk_add_f32 {vr(t,2)}, {vr(t,2)}, {vr(26,2)} op_sel_hi:[1,0] neg_lo:[0,1] neg_hi:[0,1]''')
            if i < 2: A(f'v_pk_mul_f32 {vr(acc,2)}, {vr(t,2)}, {vr(t,2)}')
            else: A(f'v_pk_fma_f32 {vr(acc,2)}, {vr(t,2)}, {vr(t,2)}, {vr(acc,2)}')
            A(f'v_cvt_pk_bf16_f32 v{b+i}, v{t}, v{t+1}')
        A(f'''v_pk_add_f32 v[28:29], v[28:29], v[30:31]
        v_add_f32 v28, v28, v29''')
        red8(28, 29)
        A(f'''
        v_mul_f32 v28, 0x3b000000, v28
        v_fma_f32 v28, -v25, v25, v28
        v_max_f32 v28, 0, v28
        v_cvt_pk_bf16_f32 v28, v28, v28
        v_and_b32 v28, {sT3}, v28
        v_add_f32 v28, 0x3727c5ac, v28
        v_cvt_pk_bf16_f32 v28, v28, v28
        v_and_b32 v28, {sT3}, v28
        v_sqrt_f32 v28, v28
        s_nop 0
        v_cvt_pk_bf16_f32 v28, v28, v28
        v_and_b32 v28, {sT3}, v28
        v_rcp_f32 v26, v28
        ''')
        for i in range(32):
            t = 32 + 2 * (i & 7)
            A(f'''v_lshlrev_b32 v{t}, 16, v{b+i}
            v_and_b32 v{t+1}, {sT3}, v{b+i}
            v_pk_mul_f32 {vr(t,2)}, {vr(t,2)}, {vr(26,2)} op_sel_hi:[1,0]
            v_cvt_pk_bf16_f32 v{b+i}, v{t}, v{t+1}''')
            if i & 3 == 3:
                ii = i >> 2
                ad = 19 + (rg & 1) + (2 if ii >= 4 else 0)
                A(f'ds_write_b128 v{ad}, {vr(b + 4*ii, 4)} offset:{(ii & 3) * 16384 + (rg >> 1) * 1024}')
    A('s_waitcnt lgkmcnt(0)\ns_barrier\nw_noln:')
    A(f's_cmp_eq_u32 {sIsV}, 2\ns_cbranch_scc1 w_epi_done')
    def perms(src, dst):
        o = []
        for T in range(8):
            for i in range(4):
                o.append(f'v_perm_b32 v{F[dst] + 4*T + i}, v{R[src] + (2*i+1)*4 + (T>>1)}, v{R[src] + 2*i*4 + (T>>1)}, {sSelHi if T & 1 else sSelLo}')
        return o
    A('v_mov_b32 v160, v12\nv_mov_b32 v161, v13')
    A(f'ds_read_b128 {vr(XF,4)}, v160\nds_read_b128 {vr(XF+4,4)}, v160 offset:1024')
    A('s_waitcnt vmcnt(8)')
    for t in perms(0, 0): A(t)
    for t in wload(0): A(t)
    A(f's_cmp_eq_u32 {sIsV}, 1\ns_cbranch_scc1 w_gemm_v')
    def kstep(par, first, isV):
        fill = ['s_waitcnt vmcnt(8)'] + perms(1 - par, 1 - par) + wload(1 - par)
        for tt in range(8):
            A('s_waitcnt lgkmcnt(1)')
            x = vr(XF + 4 * (tt & 3), 4)
            for T in range(8):
                d = vr((tt * 8 + T) * 4, 4, 'a')
                f = vr(F[par] + 4 * T, 4)
                a, b = (x, f) if isV else (f, x)
                A(f'v_mfma_f32_16x16x32_bf16 {d}, {a}, {b}, {"0" if first else d}')
                if T == 0:
                    n = tt + 2
                    dst = vr(XF + 4 * (n & 3), 4)
                    if n < 8: A(f'ds_read_b128 {dst}, v{160 + par} offset:{n * 1024}')
                    elif par == 0: A(f'ds_read_b128 {dst}, v161 offset:{(n - 8) * 1024}')
                    else: A(f'ds_read_b128 {dst}, v160 offset:{16384 + (n - 8) * 1024}')
                elif fill: A(fill.pop(0))
        assert not fill
        if par == 1:
            A('v_add_u32 v160, 16384, v160\nv_add_u32 v161, 16384, v161')
    for isV in (0, 1):
        sfx = 'v' if isV else 'n'
        if isV: A('w_gemm_v:')
        kstep(0, True, isV); kstep(1, False, isV)
        A(f's_mov_b32 {sCnt}, 7\nw_loop_{sfx}:')
        kstep(0, False, isV); kstep(1, False, isV)
        A(f's_sub_u32 {sCnt}, {sCnt}, 1\ns_cmp_lg_u32 {sCnt}, 0\ns_cbranch_scc1 w_loop_{sfx}')
        A('s_waitcnt vmcnt(0) lgkmcnt(0)')
        n = 0
        if not isV:
            for tt in range(8):
                for r in range(4):
                    t = 32 + 12 * (n % 8); n += 1
                    for T in range(8):
                        A(f'v_accvgpr_read_b32 v{t + T}, a{(tt * 8 + T) * 4 + r}')
                    for i in range(4):
                        A(f'v_cvt_pk_bf16_f32 v{t + 8 + i}, v{t + 2*i}, v{t + 2*i + 1}')
                    for i in range(4):
                        A(f'v_pk_max_i16 v{t + 8 + i}, v{t + 8 + i}, {sRelu}')
                    A(f'buffer_store_dwordx4 {vr(t + 8, 4)}, v14, {S_WS}, {sOut} offen offset:{r * 256} sc1')
                A(f's_add_u32 {sOut}, {sOut}, {TS}')
            A('s_branch w_epi_done')
        else:
            for sg in range(4):
                for T in range(8):
                    t = 32 + 12 * (n % 8); n += 1
                    for i in range(8):
                        A(f'v_accvgpr_read_b32 v{t + i}, a{((2 * sg + (i >> 2)) * 8 + T) * 4 + (i & 3)}')
                    for i in range(4):
                        A(f'v_cvt_pk_bf16_f32 v{t + 8 + i}, v{t + 2*i}, v{t + 2*i + 1}')
                    A(f'buffer_store_dwordx4 {vr(t + 8, 4)}, v15, {S_WS}, {sOut} offen offset:{(T & 3) * 1024} sc1')
                    if T == 3: A(f's_add_u32 {sOut}, {sOut}, 4096')
                A(f's_add_u32 {sOut}, {sOut}, {0x40000 - 4096}')
    A('w_epi_done:')
    A(f'''
    s_cmp_lg_u32 {sRnd}, 0
    s_cbranch_scc1 w_initok
    v_mov_b32 v16, 0
    w_initpoll:
    buffer_load_dwordx2 v[18:19], v16, {S_DBG}, 0 offen sc1
    s_sub_u32 {sBud}, {sBud}, 1
    s_cbranch_scc1 k_end
    s_waitcnt vmcnt(0)
    v_readfirstlane_b32 {sT}, v18
    v_readfirstlane_b32 {sT2}, v19
    s_add_u32 {sT}, {sT}, {sT2}
    s_lshr_b32 {sT2}, {sT}, 16
    s_add_u32 {sT}, {sT}, {sT2}
    s_lshr_b32 {sT2}, {sT}, 8
    s_add_u32 {sT}, {sT}, {sT2}
    s_and_b32 {sT}, {sT}, 0xff
    s_cmp_lg_u32 {sT}, 32
    s_cbranch_scc1 w_initpoll
    w_initok:
    s_waitcnt vmcnt(0)
    s_barrier
    s_cmp_lg_u32 {sW_}, 0
    s_cbranch_scc1 w_noflag
    v_mov_b32 v16, 0
    v_mov_b32 v17, 1
    buffer_store_dword v17, v16, {S_WS}, {sFlg} offen sc1
    w_noflag:
    s_cmp_lg_u32 {sRnd}, 0
    s_cbranch_scc1 w_p1done
    s_mov_b32 {sRnd}, 1
    s_cmp_lt_u32 {sG}, 11
    s_cbranch_scc0 w_r2b
    s_add_u32 {sG}, {sG}, 16
    s_mov_b32 {sNeedLN}, 0
    s_branch w_task
    w_r2b:
    s_sub_u32 {sT}, {sIdx}, 154
    s_cmp_lt_u32 {sT}, 54
    s_cbranch_scc0 w_p1done
    s_and_b32 {sMt}, {sT}, 1
    s_add_u32 {sMt}, {sMt}, 14
    s_lshr_b32 {sG}, {sT}, 1
    s_branch w_task
    w_p1done:
    ''')


def phase2(A, opt):
    sSeg, sI, sTile, sC0, sRh = 's11', 's12', 's13', 's14', 's15'
    sA, sB = 's16', 's17'
    WH = 168
    A.reset_track()
    A(f'''
    s_lshr_b32 {sC0}, {sTT}, 1
    s_lshl_b32 {sC0}, {sC0}, 6
    s_and_b32 {sRh}, {sTT}, 1
    v_lshlrev_b32 v4, 13, v3
    v_lshl_add_u32 v4, v2, 2, v4
    v_add_u32 v4, {sC0}, v4
    v_add_u32 v5, 4096, v4
    s_lshl_b32 {sA}, {sW_}, 20
    s_mul_i32 {sB}, {sW_}, {352 * 1024}
    ''')
    NG = 43
    DEP = 6
    def issue(gi):
        b = 32 + 8 * (gi % (DEP + 1))
        srd, so = (S_WO, sA) if gi < 32 else (S_W2, sB)
        for j in range(8):
            A(f'buffer_load_dword v{b + j}, v{4 + (j >> 2)}, {srd}, {so} offen offset:{(j & 3) * 1024}', tag=gi)
        A(f's_add_u32 {so}, {so}, 32768')
    def process(gi):
        b = 32 + 8 * (gi % (DEP + 1))
        A.wait_vm(gi)
        t0 = 96 + 8 * (gi & 1) if gi < 32 else WH + 8 * (gi - 32)
        for T in range(2):
            for i in range(4):
                A(f'v_perm_b32 v{t0 + 4*T + i}, v{b + 2*i + 1}, v{b + 2*i}, {sSelHi if T else sSelLo}')
        if gi < 32:
            for i in range(8): A(f'v_accvgpr_write_b32 a{8 * gi + i}, v{t0 + i}')
    for gi in range(DEP): issue(gi)
    for gi in range(NG):
        if gi + DEP < NG: issue(gi + DEP)
        process(gi)
    A(f'''
    v_lshlrev_b32 v4, 4, v1
    v_and_b32 v5, 3, v1
    v_min_u32 v5, 2, v5
    v_lshrrev_b32 v6, 2, v1
    v_lshlrev_b32 v6, 6, v6
    v_lshl_add_u32 v5, v5, 4, v6
    v_and_b32 v6, 3, v1
    v_cmp_le_u32 s[80:81], 2, v6
    s_mov_b32 {sA}, {FLAG_KV}
    s_mov_b32 {sB}, {FLAG_QF}
    w_p1poll:
    buffer_load_dwordx4 v[8:11], v4, {S_WS}, {sA} offen sc1
    buffer_load_dwordx4 v[16:19], v5, {S_WS}, {sB} offen sc1
    s_sub_u32 {sBud}, {sBud}, 1
    s_cbranch_scc1 k_end
    s_waitcnt vmcnt(0)
    v_cndmask_b32 v19, v19, v18, s[80:81]
    v_min3_u32 v8, v8, v9, v10
    v_min3_u32 v8, v8, v11, v16
    v_min3_u32 v8, v8, v17, v18
    v_min_u32 v8, v8, v19
    v_cmp_eq_u32 vcc, 0, v8
    s_cbranch_vccz w_p1ok
    s_sleep 8
    s_branch w_p1poll
    w_p1ok:
    ''')
    A(f'''
    v_and_b32 v5, 7, v2
    v_lshlrev_b32 v5, 4, v5
    v_lshl_add_u32 v4, v3, 7, v5           ; KM: g*128 + (n&7)*16
    v_lshrrev_b32 v5, 2, v2
    v_lshlrev_b32 v5, 11, v5
    v_lshl_add_u32 v5, v3, 8, v5
    v_and_b32 v6, 3, v2
    v_lshl_add_u32 v5, v6, 6, v5           ; VM
    v_lshlrev_b32 v6, 10, v2
    v_lshl_add_u32 v6, v3, 4, v6
    v_add_u32 v6, {sC0}, v6                ; x/out: n*1024 + g*16 + c0
    s_lshl_b32 {sT}, {sW_}, 11
    v_add_u32 v7, {sT}, v15
    v_and_b32 v8, 3, v1
    v_lshlrev_b32 v8, 2, v8
    v_and_b32 v9, 7, v1
    v_lshlrev_b32 v9, 2, v9
    s_lshl_b32 {sT}, {sW_}, 4
    v_lshlrev_b32 v10, 2, v3
    v_sub_u32 v10, v2, v10
    v_add_u32 v10, {sT}, v10               ; 16qt + n - 4g
    s_sub_u32 {sSeg}, {sQ}, 1
    s_mov_b32 {sI}, 1
    s_mov_b32 {sT3}, 0xffff0000
    ''')
    for i in range(8):
        A(f'v_cmp_le_i32 s[{80 + 2*i}:{81 + 2*i}], {16 * (i >> 2) + (i & 3)}, v10')
    ACA, ACB = 16, 24
    Qf, K0, Vf, KMf, VMf, S, Hf = 32, 48, 80, 112, 128, 144, 112
    OA = 48
    XR = 160
    A('p2_seg:')
    A.reset_track()
    A(f'''
    s_lshl_b32 {sT}, {sSeg}, 1
    s_add_u32 {sT2}, {sT}, {sRh}
    s_mul_i32 {sTile}, {sT2}, {TS}
    s_add_u32 {sTile}, {sTile}, {IMG + 64 * 4096}
    s_mul_i32 {sA}, {sW_}, {11 * 1024}
    s_add_u32 {sA}, {sA}, {sTile}
    s_add_u32 {sA}, {sA}, {32 * 4096}
    ''')
    for i in range(11):
        A(f'buffer_load_dwordx4 {vr(Hf + 4*i, 4)}, v15, {S_WS}, {sA} offen offset:{(i & 3) * 1024} sc1', tag=('h', i))
        if i & 3 == 3: A(f's_add_u32 {sA}, {sA}, 4096')
    A(f'''s_lshl_b32 {sB}, {sT2}, 14
    buffer_load_dwordx4 {vr(XR, 4)}, v6, {S_X}, {sB} offen
    s_cmp_lt_u32 {sW_}, 2
    s_cbranch_scc0 p2_noqkv
    s_mul_i32 {sA}, {sT}, {TS}
    s_lshl_b32 {sT2}, {sTT}, 12
    s_add_u32 {sA}, {sA}, {sT2}
    s_add_u32 {sA}, {sA}, {IMG}
    s_mul_i32 {sB}, {sW_}, {TS}
    s_add_u32 {sB}, {sB}, {sA}
    s_add_u32 {sB}, {sB}, {32 * 4096}
    ''')
    for kq in range(4):
        A(f'buffer_load_dwordx4 {vr(Qf + 4*kq, 4)}, v15, {S_WS}, {sB} offen offset:{kq * 1024} sc1')
    for tau in range(2):
        for kq in range(4):
            A(f'buffer_load_dwordx4 {vr(K0 + 16*tau + 4*kq, 4)}, v15, {S_WS}, {sA} offen offset:{kq * 1024} sc1')
        if tau == 0: A(f's_add_u32 {sA}, {sA}, {TS}')
    A(f'''s_lshl_b32 {sA}, {sSeg}, 18
    s_lshl_b32 {sT2}, {sTT}, 13
    s_add_u32 {sA}, {sA}, {sT2}
    s_add_u32 {sA}, {sA}, {VW}''')
    for T in range(8):
        A(f'buffer_load_dwordx4 {vr(Vf + 4*T, 4)}, v15, {S_WS}, {sA} offen offset:{(T & 3) * 1024} sc1')
        if T == 3: A(f's_add_u32 {sA}, {sA}, 4096')
    A('p2_noqkv:')
    A('s_waitcnt vmcnt(0)')
    for i in range(11):
        for T in range(2):
            d = vr(ACB + 4*T, 4)
            A(f'v_mfma_f32_16x16x32_bf16 {d}, {vr(WH + 8*i + 4*T, 4)}, {vr(Hf + 4*i, 4)}, {"0" if i == 0 else d}')
    A(f'ds_write_b128 v7, {vr(ACB,4)} offset:8192\nds_write_b128 v7, {vr(ACB+4,4)} offset:9216')
    A(f's_cmp_lt_u32 {sW_}, 2\ns_cbranch_scc0 p2_noatt')
    for kq in range(4):
        for tau in range(2):
            d = vr(S + 4*tau, 4)
            A(f'v_mfma_f32_16x16x32_bf16 {d}, {vr(K0 + 16*tau + 4*kq, 4)}, {vr(Qf + 4*kq, 4)}, {"0" if kq == 0 else d}')
    A(f'''
    s_lshl_b32 {sT}, {sTT}, 8
    s_add_u32 {sT}, {sT}, {FLAG_PROG}
    p2_ppoll:
    buffer_load_dword v11, v8, {S_WS}, {sT} offen sc1
    s_sub_u32 {sBud}, {sBud}, 1
    s_cbranch_scc1 k_end
    s_waitcnt vmcnt(0)
    v_cmp_ge_u32 vcc, {sSeg}, v11
    s_cbranch_vccz p2_pok
    s_sleep {opt.get('psleep', 6)}
    s_branch p2_ppoll
    p2_pok:
    s_lshl_b32 {sT}, {sSeg}, 5
    s_add_u32 {sT}, {sT}, {sTT}
    s_lshl_b32 {sA}, {sT}, 13
    s_add_u32 {sA}, {sA}, {REC}
    s_add_u32 {sB}, {sA}, 4096
    ''')
    for kq in range(4):
        A(f'buffer_load_dwordx4 {vr(KMf + 4*kq, 4)}, v4, {S_WS}, {sA if kq < 2 else sB} offen offset:{(kq & 1) * 2048} sc1', tag=('km', kq))
    for i in range(4):
        A(f'buffer_load_dwordx4 {vr(VMf + 4*i, 4)}, v5, {S_WS}, {sA} offen offset:{1024 + i * 16} sc1', tag='vm')
    for kq in range(4):
        A.wait_vm(('km', kq))
        d = vr(S + 8, 4)
        A(f'v_mfma_f32_16x16x32_bf16 {d}, {vr(KMf + 4*kq, 4)}, {vr(Qf + 4*kq, 4)}, {"0" if kq == 0 else d}')
    def rnd(lo, n):
        for i in range(lo, lo + n, 2):
            A(f'v_cvt_pk_bf16_f32 v{i+1}, v{i}, v{i+1}\nv_lshlrev_b32 v{i}, 16, v{i+1}\nv_and_b32 v{i+1}, {sT3}, v{i+1}')
    rnd(S, 12)
    for i in range(12): A(f'v_mul_f32 v{S+i}, 0x3db504f3, v{S+i}')
    rnd(S, 12)
    A('v_mov_b32 v12, 0xce6e6b28')
    for i in range(8): A(f'v_cndmask_b32 v{S+i}, v12, v{S+i}, s[{80+2*i}:{81+2*i}]')
    A(f'''
    v_max3_f32 v12, v{S}, v{S+1}, v{S+2}
    v_max3_f32 v13, v{S+3}, v{S+4}, v{S+5}
    v_max3_f32 v12, v12, v{S+6}, v{S+7}
    v_max3_f32 v13, v13, v{S+8}, v{S+9}
    v_max3_f32 v12, v12, v{S+10}, v{S+11}
    v_max_f32 v12, v12, v13
    v_mov_b32 v13, v12
    v_permlane32_swap_b32 v12, v13
    v_max_f32 v12, v12, v13
    v_mov_b32 v13, v12
    v_permlane16_swap_b32 v12, v13
    v_max_f32 v12, v12, v13
    ''')
    for i in range(12): A(f'v_sub_f32 v{S+i}, v{S+i}, v12')
    for i in range(12): A(f'v_mul_f32 v{S+i}, 0x3fb8aa3b, v{S+i}')
    for i in range(12): A(f'v_exp_f32 v{S+i}, v{S+i}')
    A(f'''
    v_add_f32 v12, v{S+8}, v{S+9}
    v_add_f32 v13, v{S+10}, v{S+11}
    v_add_f32 v12, v12, v13
    v_mul_f32 v12, 0.5, v12
    ''')
    for i in range(8): A(f'v_add_f32 v12, v12, v{S+i}')
    A(f'''
    v_mov_b32 v13, v12
    v_permlane32_swap_b32 v12, v13
    v_add_f32 v12, v12, v13
    v_mov_b32 v13, v12
    v_permlane16_swap_b32 v12, v13
    v_add_f32 v12, v12, v13
    v_rcp_f32 v12, v12
    ''')
    for i in range(12): A(f'v_mul_f32 v{S+i}, v12, v{S+i}')
    P = Qf
    for i in range(6): A(f'v_cvt_pk_bf16_f32 v{P+i}, v{S+2*i}, v{S+2*i+1}')
    for T in range(8):
        A(f'v_mfma_f32_16x16x32_bf16 {vr(OA + 4*T, 4)}, {vr(Vf + 4*T, 4)}, {vr(P, 4)}, 0')
    A.wait_vm('vm')
    for T in range(8):
        A(f'v_mfma_f32_16x16x16_bf16 {vr(OA + 4*T, 4)}, {vr(VMf + 2*T, 2)}, {vr(P + 4, 2)}, {vr(OA + 4*T, 4)}')
    A(f'''
    s_lshl_b32 {sT}, {sSeg}, 1
    s_add_u32 {sT}, {sT}, {sW_}
    s_mul_i32 {sA}, {sT}, {TS}
    s_lshl_b32 {sT2}, {sTT}, 12
    s_add_u32 {sA}, {sA}, {sT2}
    s_add_u32 {sA}, {sA}, {IMG + 64 * 4096}
    ''')
    for r in range(4):
        for i in range(4):
            A(f'v_cvt_pk_bf16_f32 v{Vf + 4*r + i}, v{OA + 8*i + r}, v{OA + 8*i + 4 + r}')
        A(f'buffer_store_dwordx4 {vr(Vf + 4*r, 4)}, v14, {S_WS}, {sA} offen offset:{r * 256} sc1')
    A(f'''
    p2_noatt:
    s_waitcnt vmcnt(0) lgkmcnt(0)
    s_barrier
    s_lshl_b32 {sT}, {sQ}, 7
    s_add_u32 {sT}, {sT}, {FLAG_O}
    s_cmp_lg_u32 {sW_}, 0
    s_cbranch_scc1 p2_nof
    s_lshl_b32 {sT2}, {sTT}, 2
    s_add_u32 {sT2}, {sT2}, {sT}
    v_mov_b32 v12, 0
    v_mov_b32 v13, {sI}
    buffer_store_dword v13, v12, {S_WS}, {sT2} offen sc1
    ''')
    for w in range(1, 4):
        for T in range(2):
            A(f'ds_read_b128 {vr(32 + 8*w + 4*T, 4)}, v15 offset:{8192 + w*2048 + T*1024}')
    A('s_waitcnt lgkmcnt(0)')
    for w in range(1, 4):
        for i in range(8): A(f'v_add_f32 v{ACB+i}, v{ACB+i}, v{32 + 8*w + i}')
    for r in range(4): A(f'v_cvt_pk_bf16_f32 v{XR+4+r}, v{ACB+r}, v{ACB+4+r}')
    A(f'''
    p2_nof:
    s_lshl_b32 {sT2}, {sW_}, 5
    s_add_u32 {sT}, {sT}, {sT2}
    p2_opoll:
    buffer_load_dword v11, v9, {S_WS}, {sT} offen sc1
    s_sub_u32 {sBud}, {sBud}, 1
    s_cbranch_scc1 k_end
    s_waitcnt vmcnt(0)
    v_cmp_gt_u32 vcc, {sI}, v11
    s_cbranch_vccz p2_ook
    s_sleep {opt.get('osleep', 4)}
    s_branch p2_opoll
    p2_ook:
    s_lshl_b32 {sA}, {sW_}, 15
    s_add_u32 {sA}, {sA}, {sTile}
    ''')
    A.reset_track()
    for i in range(32):
        A(f'buffer_load_dwordx4 {vr(32 + 4*i, 4)}, v15, {S_WS}, {sA} offen offset:{(i & 3) * 1024} sc1', tag=i)
        if i & 3 == 3: A(f's_add_u32 {sA}, {sA}, 4096')
    for i in range(32):
        A.wait_vm(i)
        for T in range(2):
            d = vr(ACA + 4*T, 4)
            A(f'v_mfma_f32_16x16x32_bf16 {d}, {vr(8*i + 4*T, 4, "a")}, {vr(32 + 4*i, 4)}, {"0" if i == 0 else d}')
    A(f'''ds_write_b128 v7, {vr(ACA,4)}
    ds_write_b128 v7, {vr(ACA+4,4)} offset:1024
    s_waitcnt lgkmcnt(0)
    s_barrier
    s_cmp_lg_u32 {sW_}, 0
    s_cbranch_scc1 p2_next''')
    for w in range(1, 4):
        for T in range(2):
            A(f'ds_read_b128 {vr(32 + 8*w + 4*T, 4)}, v15 offset:{w*2048 + T*1024}')
    A('s_waitcnt lgkmcnt(0)')
    for w in range(1, 4):
        for i in range(8): A(f'v_add_f32 v{ACA+i}, v{ACA+i}, v{32 + 8*w + i}')
    for r in range(4):
        A(f'''v_cvt_pk_bf16_f32 v32, v{ACA+r}, v{ACA+4+r}
        v_lshlrev_b32 v33, 16, v32
        v_and_b32 v34, {sT3}, v32
        v_lshlrev_b32 v35, 16, v{XR+r}
        v_and_b32 v36, {sT3}, v{XR+r}
        v_add_f32 v33, v33, v35
        v_add_f32 v34, v34, v36
        v_cvt_pk_bf16_f32 v32, v33, v34
        v_lshlrev_b32 v33, 16, v32
        v_and_b32 v34, {sT3}, v32
        v_lshlrev_b32 v35, 16, v{XR+4+r}
        v_and_b32 v36, {sT3}, v{XR+4+r}
        v_add_f32 v33, v33, v35
        v_add_f32 v34, v34, v36
        v_cvt_pk_bf16_f32 v{40+r}, v33, v34''')
    A(f'''
    s_lshl_b32 {sT}, {sSeg}, 1
    s_add_u32 {sT}, {sT}, {sRh}
    s_lshl_b32 {sT}, {sT}, 14
    buffer_store_dwordx4 v[40:43], v6, {S_OUT}, {sT} offen
    p2_next:
    s_add_u32 {sSeg}, {sSeg}, 7
    s_add_u32 {sI}, {sI}, 1
    s_cmp_lt_u32 {sSeg}, 64
    s_cbranch_scc1 p2_seg
    ''')
```
